```python
import torch

def _softmax(x, axis=-1):
    return torch.softmax(x, dim=axis)
def _gelu(x):
    return torch.nn.functional.gelu(x, approximate="tanh")
def _silu(x):
    return torch.nn.functional.silu(x)
def _sigmoid(x):
    return torch.sigmoid(x)
def _layernorm(x, axis=-1, eps=1e-5):
    m = x.mean(dim=axis, keepdim=True)
    v = x.var(dim=axis, keepdim=True, unbiased=False)
    return (x - m) / torch.sqrt(v + eps)
def _scatter_add(tgt, idx, src, axis=0):
    return tgt.clone().index_add_(axis, idx, src)
def _segment_sum(src, seg, n):
    out = torch.zeros((n,) + src.shape[1:], dtype=src.dtype)
    return out.index_add_(0, seg, src)
def _pad(x, pw):
    flat = tuple(v for pair in reversed(pw) for v in pair)
    return torch.nn.functional.pad(x, flat)

kernel_name = 'standalone__weight_only_int_omniquant__prompt'

def setup_inputs():

    _w = (lambda a: (lambda t: t.to(torch.bfloat16) if t.is_floating_point() else t)(torch.as_tensor(a)))
    B, S, D, F = 1, 2048, 1024, 3584
    bits = 4
    G = -1 if -1 > 0 else D
    D = (D // G) * G
    ng = D // G
    qmax = (1 << bits) - 1
    qw = torch.randint(0, qmax + 1, (D, F)).to(torch.int32)
    scales = (torch.abs((lambda *s: torch.randn(*s, dtype=torch.bfloat16) * 0.05)(ng, F)) * 0.05 + 0.01).to(float)
    zeros = torch.randint(0, qmax + 1, (ng, F)).to(float)
    act_scale = (torch.abs((lambda *s: torch.randn(*s, dtype=torch.bfloat16) * 0.05)(D)) * 0.5 + 0.5).to(float)
    return {
        "x": _w((lambda *s: torch.randn(*s, dtype=torch.bfloat16) * 0.05)(B, S, D)),
        "qw": _w(qw),
        "scales": _w(scales),
        "zeros": _w(zeros),
        "act_scale": _w(act_scale),
    }

def reference(x, qw, scales, zeros, act_scale):
    B, S, D = x.shape
    ng, F = scales.shape
    G = D // ng
    s = (lambda x, n, axis: torch.repeat_interleave(x, n, dim=axis))(scales, G, axis=0)
    z = (lambda x, n, axis: torch.repeat_interleave(x, n, dim=axis))(zeros, G, axis=0)
    w = ((lambda x, dt: x.to(dt))(qw, x.dtype) - z) * s
    xs = x * (lambda x, dt: x.to(dt))(act_scale, x.dtype)
    return torch.einsum("bsd,df->bsf", xs, w)
```

```python
import sys
NAME = "standalone__weight_only_int_omniquant__prompt"
M, K, N = 2048, 1024, 3584
hdr = open('cdna_kernels/%s.s.ref' % NAME).read().split('\n')
top = [l for l in hdr if l.startswith(';') and '@launch' not in l and 'Override' not in l and 'grid=ceil' not in l]
out = []
o = out.append
for l in top: o(l)
extra_empty = int(sys.argv[2]) if len(sys.argv) > 2 else 0
o("; @launch kernel=prep_kernel grid=(1472,1,1) block=(256,1,1) lds=0")
for i in range(extra_empty):
    o("; @launch kernel=empty_kernel grid=(256,1,1) block=(256,1,1) lds=0")
o("; @launch kernel=gemm_kernel grid=(%d,1,1) block=(64,1,1) lds=0" % ((M//32)*(N//32)))
o('.amdgcn_target "amdgcn-amd-amdhsa--gfx950"')
o(".text")
def srd(d, b, size):
    o(f"s_mov_b32 s{d}, s{b}"); o(f"s_mov_b32 s{d+1}, s{b+1}"); o(f"s_mov_b32 s{d+2}, {size}"); o(f"s_mov_b32 s{d+3}, 0x20000")
def kstart(n):
    o(f".globl {n}"); o(".p2align 8"); o(f".type {n},@function"); o(f"{n}:")
kstart("empty_kernel")
o("s_endpgm")
kstart("prep_kernel")
o("s_cmp_ge_u32 s2, 1472"); o("s_cbranch_scc1 Lprep_done")
o("s_load_dwordx4 s[4:7], s[0:1], 0")
o("s_load_dwordx4 s[8:11], s[0:1], 16")
o("s_load_dwordx2 s[12:13], s[0:1], 32")
o("s_load_dwordx2 s[14:15], s[0:1], 56")
o("s_waitcnt lgkmcnt(0)")
srd(16, 4, M*K*2); srd(20, 6, K*N*4); srd(24, 8, N*2); srd(28, 10, N*2); srd(32, 12, K*2); srd(36, 14, (N*K+M*K)*2)
o("s_cmp_ge_u32 s2, 448"); o("s_cbranch_scc1 Lprep_x")
o("s_lshl_b32 s3, s2, 8"); o("v_add_u32 v1, s3, v0")
o("s_mov_b32 s40, 4793491")
o("v_mul_hi_u32 v2, v1, s40")
o("s_movk_i32 s41, 896"); o("v_mul_lo_u32 v3, v2, s41"); o("v_sub_u32 v3, v1, v3")
o("s_mov_b32 s41, %d" % (8*N*4)); o("v_mul_lo_u32 v4, v2, s41"); o("v_lshl_add_u32 v4, v3, 4, v4")
for r in range(8):
    o(f"s_mov_b32 s42, {r*N*4}")
    o(f"buffer_load_dwordx4 v[{8+4*r}:{11+4*r}], v4, s[20:23], s42 offen")
o("v_lshlrev_b32 v5, 3, v3")
o("buffer_load_dwordx2 v[40:41], v5, s[24:27], 0 offen")
o("buffer_load_dwordx2 v[42:43], v5, s[28:31], 0 offen")
o("s_waitcnt vmcnt(0)")
for (src, dst) in ((40, 44), (42, 48)):
    o(f"v_lshlrev_b32 v{dst}, 16, v{src}"); o(f"v_and_b32 v{dst+1}, 0xffff0000, v{src}")
    o(f"v_lshlrev_b32 v{dst+2}, 16, v{src+1}"); o(f"v_and_b32 v{dst+3}, 0xffff0000, v{src+1}")
for r in range(8):
    for c in range(4):
        v = 8+4*r+c
        o(f"v_cvt_f32_i32 v{v}, v{v}")
        o(f"v_cvt_pk_bf16_f32 v{v}, v{v}, v{v}"); o(f"v_and_b32 v{v}, 0xffff0000, v{v}")
        o(f"v_sub_f32 v{v}, v{v}, v{48+c}")
        o(f"v_cvt_pk_bf16_f32 v{v}, v{v}, v{v}"); o(f"v_and_b32 v{v}, 0xffff0000, v{v}")
        o(f"v_mul_f32 v{v}, v{v}, v{44+c}")
for c in range(4):
    for p in range(4):
        o(f"v_cvt_pk_bf16_f32 v{52+4*c+p}, v{8+8*p+c}, v{8+8*p+4+c}")
o("v_lshlrev_b32 v6, 13, v3"); o("v_lshl_add_u32 v6, v2, 4, v6")
for c in range(4):
    o(f"s_mov_b32 s42, {c*2048}")
    o(f"buffer_store_dwordx4 v[{52+4*c}:{55+4*c}], v6, s[36:39], s42 offen")
o("s_endpgm")
o("Lprep_x:")
o("s_sub_u32 s3, s2, 448"); o("s_lshl_b32 s3, s3, 8"); o("v_add_u32 v1, s3, v0")
o("v_lshlrev_b32 v2, 4, v1")
o("buffer_load_dwordx4 v[8:11], v2, s[16:19], 0 offen")
o("v_and_b32 v3, 2047, v2")
o("buffer_load_dwordx4 v[12:15], v3, s[32:35], 0 offen")
o("s_waitcnt vmcnt(0)")
for i in range(4):
    o(f"v_lshlrev_b32 v16, 16, v{8+i}"); o(f"v_and_b32 v17, 0xffff0000, v{8+i}")
    o(f"v_lshlrev_b32 v18, 16, v{12+i}"); o(f"v_and_b32 v19, 0xffff0000, v{12+i}")
    o("v_mul_f32 v16, v16, v18"); o("v_mul_f32 v17, v17, v19")
    o(f"v_cvt_pk_bf16_f32 v{20+i}, v16, v17")
o(f"s_mov_b32 s42, {N*K*2}")
o("buffer_store_dwordx4 v[20:23], v2, s[36:39], s42 offen")
o("Lprep_done:")
o("s_endpgm")
kstart("gemm_kernel")
o("s_cmp_ge_u32 s2, %d" % ((M//32)*(N//32))); o("s_cbranch_scc1 Lg_done")
o("s_load_dwordx2 s[12:13], s[0:1], 40")
o("s_load_dwordx2 s[14:15], s[0:1], 56")
o("s_waitcnt lgkmcnt(0)")
srd(16, 14, (N*K+M*K)*2); srd(20, 12, M*N*2)
o("s_and_b32 s4, s2, 63"); o("s_lshr_b32 s5, s2, 6")
o("v_and_b32 v1, 15, v0"); o("v_lshrrev_b32 v2, 4, v0")
o("v_lshrrev_b32 v3, 2, v1"); o("v_lshlrev_b32 v3, 3, v3"); o("v_and_b32 v4, 3, v1"); o("v_add_u32 v3, v3, v4")
o("s_lshl_b32 s6, s5, 5"); o("v_add_u32 v3, s6, v3"); o("v_lshlrev_b32 v3, 11, v3"); o("v_lshl_add_u32 v3, v2, 4, v3")
o("v_add_u32 v4, 8192, v3")
o("s_lshl_b32 s7, s4, 5"); o("v_add_u32 v5, s7, v1"); o("v_lshlrev_b32 v5, 11, v5"); o("v_lshl_add_u32 v5, v2, 4, v5")
o(f"v_add_u32 v5, {N*K*2}, v5"); o("v_add_u32 v6, 32768, v5")
for i in range(16): o(f"v_mov_b32 v{32+i}, 0")
o("s_mov_b32 s8, 0")
o("Lg_k:")
o("buffer_load_dwordx4 v[8:11], v3, s[16:19], s8 offen")
o("buffer_load_dwordx4 v[12:15], v4, s[16:19], s8 offen")
o("buffer_load_dwordx4 v[16:19], v5, s[16:19], s8 offen")
o("buffer_load_dwordx4 v[20:23], v6, s[16:19], s8 offen")
o("s_waitcnt vmcnt(0)")
o("v_mfma_f32_16x16x32_bf16 v[32:35], v[8:11], v[16:19], v[32:35]")
o("v_mfma_f32_16x16x32_bf16 v[36:39], v[12:15], v[16:19], v[36:39]")
o("v_mfma_f32_16x16x32_bf16 v[40:43], v[8:11], v[20:23], v[40:43]")
o("v_mfma_f32_16x16x32_bf16 v[44:47], v[12:15], v[20:23], v[44:47]")
o("s_add_u32 s8, s8, 64"); o("s_cmp_lt_u32 s8, 2048"); o("s_cbranch_scc1 Lg_k")
o("s_nop 7"); o("s_nop 7")
for t in range(2):
    for j in range(2):
        b = 32+8*t+4*j
        o(f"v_cvt_pk_bf16_f32 v{8+4*t+2*j}, v{b}, v{b+1}"); o(f"v_cvt_pk_bf16_f32 v{9+4*t+2*j}, v{b+2}, v{b+3}")
o("v_add_u32 v5, s7, v1"); o("s_movk_i32 s9, 7168"); o("v_mul_lo_u32 v5, v5, s9")
o("v_lshl_add_u32 v5, v2, 4, v5"); o("s_lshl_b32 s6, s5, 6"); o("v_add_u32 v5, s6, v5")
o("buffer_store_dwordx4 v[8:11], v5, s[20:23], 0 offen")
o("s_mov_b32 s9, %d" % (16*7168))
o("buffer_store_dwordx4 v[12:15], v5, s[20:23], s9 offen")
o("Lg_done:")
o("s_endpgm")
o('.section .rodata,"a"')
for n in ("empty_kernel", "prep_kernel", "gemm_kernel"):
    o(".p2align 6"); o(f".amdhsa_kernel {n}")
    o("  .amdhsa_next_free_vgpr 72"); o("  .amdhsa_next_free_sgpr 48"); o("  .amdhsa_accum_offset 72")
    o("  .amdhsa_group_segment_fixed_size 0"); o("  .amdhsa_kernarg_size 64"); o("  .amdhsa_user_sgpr_count 2")
    o("  .amdhsa_user_sgpr_kernarg_segment_ptr 1"); o("  .amdhsa_system_sgpr_workgroup_id_x 1")
    o("  .amdhsa_float_denorm_mode_32 3")
    o(".end_amdhsa_kernel")
open(sys.argv[1], 'w').write('\n'.join(out) + '\n')
```

```python
import sys
NAME = "standalone__weight_only_int_omniquant__prompt"
M, K, N = 2048, 1024, 3584
hdr = open('cdna_kernels/%s.s.ref' % NAME).read().split('\n')
top = [l for l in hdr if l.startswith(';') and '@launch' not in l and 'Override' not in l and 'grid=ceil' not in l]
out = []
o = out.append
for l in top: o(l)
extra_empty = int(sys.argv[2]) if len(sys.argv) > 2 else 0
o("; @launch kernel=prep_kernel grid=(1472,1,1) block=(256,1,1) lds=0")
for i in range(extra_empty):
    o("; @launch kernel=empty_kernel grid=(256,1,1) block=(256,1,1) lds=0")
o("; @launch kernel=gemm_kernel grid=(%d,1,1) block=(64,1,1) lds=0" % ((M//32)*(N//32)))
o('.amdgcn_target "amdgcn-amd-amdhsa--gfx950"')
o(".text")
def srd(d, b, size):
    o(f"s_mov_b32 s{d}, s{b}"); o(f"s_mov_b32 s{d+1}, s{b+1}"); o(f"s_mov_b32 s{d+2}, {size}"); o(f"s_mov_b32 s{d+3}, 0x20000")
def kstart(n):
    o(f".globl {n}"); o(".p2align 8"); o(f".type {n},@function"); o(f"{n}:")
kstart("empty_kernel")
o("s_endpgm")
kstart("prep_kernel")
o("s_cmp_ge_u32 s2, 1472"); o("s_cbranch_scc1 Lprep_done")
o("s_load_dwordx4 s[4:7], s[0:1], 0")
o("s_load_dwordx4 s[8:11], s[0:1], 16")
o("s_load_dwordx2 s[12:13], s[0:1], 32")
o("s_load_dwordx2 s[14:15], s[0:1], 56")
o("s_waitcnt lgkmcnt(0)")
srd(16, 4, M*K*2); srd(20, 6, K*N*4); srd(24, 8, N*2); srd(28, 10, N*2); srd(32, 12, K*2); srd(36, 14, (N*K+M*K)*2)
o("s_cmp_ge_u32 s2, 448"); o("s_cbranch_scc1 Lprep_x")
o("s_lshl_b32 s3, s2, 8"); o("v_add_u32 v1, s3, v0")
o("s_mov_b32 s40, 4793491")
o("v_mul_hi_u32 v2, v1, s40")
o("s_movk_i32 s41, 896"); o("v_mul_lo_u32 v3, v2, s41"); o("v_sub_u32 v3, v1, v3")
o("s_mov_b32 s41, %d" % (8*N*4)); o("v_mul_lo_u32 v4, v2, s41"); o("v_lshl_add_u32 v4, v3, 4, v4")
for r in range(8):
    o(f"s_mov_b32 s42, {r*N*4}")
    o(f"buffer_load_dwordx4 v[{8+4*r}:{11+4*r}], v4, s[20:23], s42 offen")
o("v_lshlrev_b32 v5, 3, v3")
o("buffer_load_dwordx2 v[40:41], v5, s[24:27], 0 offen")
o("buffer_load_dwordx2 v[42:43], v5, s[28:31], 0 offen")
o("v_lshlrev_b32 v7, 4, v2")
o("buffer_load_dwordx4 v[68:71], v7, s[32:35], 0 offen")
o("s_waitcnt vmcnt(0)")
for (src, dst) in ((40, 44), (42, 48)):
    o(f"v_lshlrev_b32 v{dst}, 16, v{src}"); o(f"v_and_b32 v{dst+1}, 0xffff0000, v{src}")
    o(f"v_lshlrev_b32 v{dst+2}, 16, v{src+1}"); o(f"v_and_b32 v{dst+3}, 0xffff0000, v{src+1}")
for r in range(8):
    for c in range(4):
        v = 8+4*r+c
        o(f"v_cvt_f32_i32 v{v}, v{v}")
        o(f"v_sub_f32 v{v}, v{v}, v{48+c}")
        o(f"v_mul_f32 v{v}, v{v}, v{44+c}")
        if r % 2 == 0: o(f"v_lshlrev_b32 v7, 16, v{68+r//2}")
        else: o(f"v_and_b32 v7, 0xffff0000, v{68+r//2}")
        o(f"v_mul_f32 v{v}, v{v}, v7")
for c in range(4):
    for p in range(4):
        o(f"v_cvt_pk_bf16_f32 v{52+4*c+p}, v{8+8*p+c}, v{8+8*p+4+c}")
o("v_lshlrev_b32 v6, 13, v3"); o("v_lshl_add_u32 v6, v2, 4, v6")
for c in range(4):
    o(f"s_mov_b32 s42, {c*2048}")
    o(f"buffer_store_dwordx4 v[{52+4*c}:{55+4*c}], v6, s[36:39], s42 offen")
o("s_endpgm")
o("Lprep_x:")
o("s_sub_u32 s3, s2, 448"); o("s_lshl_b32 s3, s3, 8"); o("v_add_u32 v1, s3, v0")
o("v_lshlrev_b32 v2, 4, v1")
o("buffer_load_dwordx4 v[8:11], v2, s[16:19], 0 offen")
o("v_and_b32 v3, 2047, v2")
o("buffer_load_dwordx4 v[12:15], v3, s[32:35], 0 offen")
o("s_waitcnt vmcnt(0)")
for i in range(4):
    o(f"v_lshlrev_b32 v16, 16, v{8+i}"); o(f"v_and_b32 v17, 0xffff0000, v{8+i}")
    o(f"v_lshlrev_b32 v18, 16, v{12+i}"); o(f"v_and_b32 v19, 0xffff0000, v{12+i}")

    o(f"v_cvt_pk_bf16_f32 v{20+i}, v16, v17")
o(f"s_mov_b32 s42, {N*K*2}")
o("buffer_store_dwordx4 v[20:23], v2, s[36:39], s42 offen")
o("Lprep_done:")
o("s_endpgm")
kstart("gemm_kernel")
o("s_cmp_ge_u32 s2, %d" % ((M//32)*(N//32))); o("s_cbranch_scc1 Lg_done")
o("s_load_dwordx2 s[12:13], s[0:1], 40")
o("s_load_dwordx2 s[14:15], s[0:1], 56")
o("s_waitcnt lgkmcnt(0)")
srd(16, 14, (N*K+M*K)*2); srd(20, 12, M*N*2)
o("s_and_b32 s4, s2, 63"); o("s_lshr_b32 s5, s2, 6")
o("v_and_b32 v1, 15, v0"); o("v_lshrrev_b32 v2, 4, v0")
o("v_lshrrev_b32 v3, 2, v1"); o("v_lshlrev_b32 v3, 3, v3"); o("v_and_b32 v4, 3, v1"); o("v_add_u32 v3, v3, v4")
o("s_lshl_b32 s6, s5, 5"); o("v_add_u32 v3, s6, v3"); o("v_lshlrev_b32 v3, 11, v3"); o("v_lshl_add_u32 v3, v2, 4, v3")
o("v_add_u32 v4, 8192, v3")
o("s_lshl_b32 s7, s4, 5"); o("v_add_u32 v5, s7, v1"); o("v_lshlrev_b32 v5, 11, v5"); o("v_lshl_add_u32 v5, v2, 4, v5")
o(f"v_add_u32 v5, {N*K*2}, v5"); o("v_add_u32 v6, 32768, v5")
for i in range(16): o(f"v_mov_b32 v{32+i}, 0")
o("s_mov_b32 s8, 0")
o("Lg_k:")
o("buffer_load_dwordx4 v[8:11], v3, s[16:19], s8 offen")
o("buffer_load_dwordx4 v[12:15], v4, s[16:19], s8 offen")
o("buffer_load_dwordx4 v[16:19], v5, s[16:19], s8 offen")
o("buffer_load_dwordx4 v[20:23], v6, s[16:19], s8 offen")
o("s_waitcnt vmcnt(0)")
o("v_mfma_f32_16x16x32_bf16 v[32:35], v[8:11], v[16:19], v[32:35]")
o("v_mfma_f32_16x16x32_bf16 v[36:39], v[12:15], v[16:19], v[36:39]")
o("v_mfma_f32_16x16x32_bf16 v[40:43], v[8:11], v[20:23], v[40:43]")
o("v_mfma_f32_16x16x32_bf16 v[44:47], v[12:15], v[20:23], v[44:47]")
o("s_add_u32 s8, s8, 64"); o("s_cmp_lt_u32 s8, 2048"); o("s_cbranch_scc1 Lg_k")
o("s_nop 7"); o("s_nop 7")
for t in range(2):
    for j in range(2):
        b = 32+8*t+4*j
        o(f"v_cvt_pk_bf16_f32 v{8+4*t+2*j}, v{b}, v{b+1}"); o(f"v_cvt_pk_bf16_f32 v{9+4*t+2*j}, v{b+2}, v{b+3}")
o("v_add_u32 v5, s7, v1"); o("s_movk_i32 s9, 7168"); o("v_mul_lo_u32 v5, v5, s9")
o("v_lshl_add_u32 v5, v2, 4, v5"); o("s_lshl_b32 s6, s5, 6"); o("v_add_u32 v5, s6, v5")
o("buffer_store_dwordx4 v[8:11], v5, s[20:23], 0 offen")
o("s_mov_b32 s9, %d" % (16*7168))
o("buffer_store_dwordx4 v[12:15], v5, s[20:23], s9 offen")
o("Lg_done:")
o("s_endpgm")
o('.section .rodata,"a"')
for n in ("empty_kernel", "prep_kernel", "gemm_kernel"):
    o(".p2align 6"); o(f".amdhsa_kernel {n}")
    o("  .amdhsa_next_free_vgpr 72"); o("  .amdhsa_next_free_sgpr 48"); o("  .amdhsa_accum_offset 72")
    o("  .amdhsa_group_segment_fixed_size 0"); o("  .amdhsa_kernarg_size 64"); o("  .amdhsa_user_sgpr_count 2")
    o("  .amdhsa_user_sgpr_kernarg_segment_ptr 1"); o("  .amdhsa_system_sgpr_workgroup_id_x 1")
    o("  .amdhsa_float_denorm_mode_32 3")
    o(".end_amdhsa_kernel")
open(sys.argv[1], 'w').write('\n'.join(out) + '\n')
```

```python
NAME = "standalone__weight_only_int_omniquant__prompt"
M, K, N = 2048, 1024, 3584
class Asm:
    def __init__(self):
        self.lines = []
        self.kernels = []
        self.launches = []
    def __call__(self, s):
        for l in s.split('\n'):
            self.lines.append(l)
    def launch(self, name, grid, block, lds=0):
        self.launches.append((name, grid, block, lds))
    def kstart(self, n, vgpr=256, sgpr=102, accum=None):
        self(f".globl {n}\n.p2align 8\n.type {n},@function\n{n}:")
        self.kernels.append((n, vgpr, sgpr, accum if accum else (vgpr+3)//4*4))
    def srd(self, d, b, size, off=None):
        if off is None:
            self(f"s_mov_b32 s{d}, s{b}\ns_mov_b32 s{d+1}, s{b+1}")
        else:
            self(f"s_add_u32 s{d}, s{b}, {off}\ns_addc_u32 s{d+1}, s{b+1}, 0")
        self(f"s_mov_b32 s{d+2}, {size}\ns_mov_b32 s{d+3}, 0x20000")
    def text(self, single=False):
        hdr = open('cdna_kernels/%s.s.ref' % NAME).read().split('\n')
        top = [l for l in hdr if l.startswith(';') and '@launch' not in l and 'Override' not in l and 'grid=ceil' not in l]
        out = list(top)
        for (n, g, b, l) in self.launches:
            if single: out.append(f"; @launch grid=({g},1,1) block=({b},1,1) lds={l}")
            else: out.append(f"; @launch kernel={n} grid=({g},1,1) block=({b},1,1) lds={l}")
        out.append('.amdgcn_target "amdgcn-amd-amdhsa--gfx950"')
        out.append(".text")
        out += self.lines
        out.append('.section .rodata,"a"')
        for (n, v, s, a) in self.kernels:
            out.append(".p2align 6")
            out.append(f".amdhsa_kernel {n}")
            out.append(f"  .amdhsa_next_free_vgpr {v}\n  .amdhsa_next_free_sgpr {s}\n  .amdhsa_accum_offset {a}")
            out.append("  .amdhsa_group_segment_fixed_size 0\n  .amdhsa_kernarg_size 64\n  .amdhsa_user_sgpr_count 2")
            out.append("  .amdhsa_user_sgpr_kernarg_segment_ptr 1\n  .amdhsa_system_sgpr_workgroup_id_x 1")
            out.append("  .amdhsa_float_denorm_mode_32 3")
            out.append(".end_amdhsa_kernel")
        return '\n'.join(out) + '\n'
    def write(self, path, single=False):
        open(path, 'w').write(self.text(single))
```

```python
import sys, argparse
from glib import *

IMG = 14336
BBASE = 98304; TBASE = BBASE + 3*IMG; LDS = TBASE + 4096
FLAG0 = 32*16*IMG; WSZ = FLAG0 + 2*128*128
OOB = "0x40000000"
QCH = 64*N*4

class VM:
    def __init__(self): self.q = []
    def add(self, tag, n=1): self.q += [tag]*n
    def wait(self, tags):
        last = max(i for i, t in enumerate(self.q) if t in tags)
        n = len(self.q) - 1 - last
        self.q = self.q[last+1:]
        assert n <= 63
        return n

def gen(opt):
    a = Asm()
    KN = opt.name
    a.launch(KN, 256, 512, LDS)
    a.kstart(KN, 256, 102)
    SL = [64,66,68,70,72,74,76,4,6,8,10,12,14,16]
    def stamp(i, cyc=False):
        if opt.stamps:
            a(f"s_memrealtime s[{SL[i]}:{SL[i]+1}]")
            if cyc and i == 2: a("s_memtime s[78:79]")
            if cyc and i == 3: a("s_memtime s[80:81]")
    stamp(0)
    a("s_cmp_ge_u32 s2, 0x100\ns_cbranch_scc1 L_end")
    a("s_load_dwordx16 s[4:19], s[0:1], 0")
    a("v_lshrrev_b32 v1, 6, v0\nv_and_b32 v2, 63, v0")
    a("v_readfirstlane_b32 s38, v1")
    a("s_nop 0")
    if opt.pf:
        a("s_cmp_lg_u32 s38, 1\ns_cbranch_scc1 L_nopf")
        a("s_getpc_b64 s[42:43]\nL_pc0:\ns_sub_u32 s42, s42, L_pc0-" + KN + "\ns_subb_u32 s43, s43, 0")
        a("v_lshlrev_b32 v3, 7, v2")
        a(f"v_min_u32 v3, L_pfend-{KN}, v3")
        a("v_mov_b32 v5, s43\nv_add_co_u32 v4, vcc, s42, v3\ns_nop 1\nv_addc_co_u32 v5, vcc, 0, v5, vcc")
        a("global_load_dword v255, v[4:5], off")
        a(f"v_add_u32 v3, 8192, v3\nv_min_u32 v3, L_pfend-{KN}, v3")
        a("v_mov_b32 v5, s43\nv_add_co_u32 v4, vcc, s42, v3\ns_nop 1\nv_addc_co_u32 v5, vcc, 0, v5, vcc")
        a("global_load_dword v254, v[4:5], off")
        a("L_nopf:")
    a("s_and_b32 s39, s2, 7\ns_lshr_b32 s40, s2, 3")
    if opt.mapping == '8x4':
        a("s_and_b32 s36, s40, 7\ns_lshr_b32 s37, s40, 3\ns_lshl_b32 s39, s39, 2\ns_add_u32 s37, s37, s39")
    elif opt.mapping == 'lin':
        a("s_mov_b32 s36, s39\ns_mov_b32 s37, s40")
    if opt.stamps:
        a("s_mov_b32 s49, s38\ns_waitcnt lgkmcnt(0)")
        a.srd(96, 18, 1 << 20, off=(128 << 20))
        for r in range(66, 82): a(f"s_mov_b32 s{r}, 0")
    a("s_cmp_lt_u32 s38, 4\ns_cbranch_scc1 L_consumer")
    a("s_sub_u32 s38, s38, 4")
    S = (8, 40); P = (72, 148); AV = (88, 124); Z = 96; XO = 132; QO = 140; LW = 102; IW = 164; WO = 168
    NV = 170; FP = 172; FV = 174; TO = 176; FS = 177; NO = 178
    a("v_lshrrev_b32 v5, 3, v2\nv_and_b32 v6, 7, v2\nv_xor_b32 v6, v6, v5\nv_lshlrev_b32 v6, 4, v6\nv_lshl_add_u32 v100, v5, 11, v6")
    a(f"s_lshl_b32 s41, s36, 19\ns_lshl_b32 s42, s38, 17\ns_add_u32 s41, s41, s42\nv_add_u32 v{XO}, s41, v100")
    for r in range(1, 8): a(f"v_add_u32 v{XO+r}, {r*16384 - (r&3)*1024}, v{XO}")
    a("v_and_b32 v3, 31, v2\nv_lshrrev_b32 v4, 5, v2")
    a(f"v_mul_u32_u24 v5, {8*N*4}, v4\nv_lshl_add_u32 v5, v3, 4, v5")
    a(f"s_mul_i32 s41, s38, {16*N*4}\ns_mul_i32 s42, s37, 448\ns_add_u32 s41, s41, s42\nv_add_u32 v5, s41, v5")
    a(f"v_cmp_gt_u32 vcc, 28, v3\nv_mov_b32 v6, 0x80000000\ns_nop 0\nv_cndmask_b32 v{QO}, v6, v5, vcc\ns_mov_b64 s[52:53], vcc")
    for r in range(1, 8): a(f"v_add_u32 v{QO+r}, {r*N*4}, v{QO}")
    a("s_mul_i32 s42, s37, 224\nv_lshl_add_u32 v7, v3, 3, s42")
    a("v_lshrrev_b32 v5, 2, v2\nv_add_u32 v6, s36, v5\nv_and_b32 v6, 7, v6\nv_and_or_b32 v5, v5, 8, v6\nv_and_b32 v6, 3, v2\nv_lshlrev_b32 v6, 3, v6\nv_lshl_add_u32 v5, v5, 7, v6\ns_lshl_b32 s41, s38, 5\nv_add_u32 v108, s41, v5")
    a(f"s_mul_i32 s47, s36, {QCH}\ns_add_u32 s63, s47, {8*QCH}")
    a("s_lshl_b32 s44, s38, 13\ns_lshl_b32 s51, s37, 4")
    a(f"s_mul_i32 s50, s38, 3584\ns_add_u32 s50, s50, {BBASE}")
    def scal(seq):
        if isinstance(seq, int):
            sl = seq % 3
            a(f"s_add_u32 s45, s36, {seq}\ns_and_b32 s45, s45, 7" + ("\ns_or_b32 s45, s45, 8" if seq >= 8 else ""))
            a(f"s_lshl_b32 s41, s45, 7\ns_add_u32 s45, s45, s51\ns_mul_i32 s42, s45, {IMG}")
            a(f"s_add_u32 s60, s44, {sl*32768}\ns_add_u32 s61, s44, {sl*32768+4096}\ns_add_u32 s62, s50, {sl*IMG}")
        else:
            a(f"s_add_u32 s45, s36, {seq}\ns_and_b32 s45, s45, 7\ns_and_b32 s46, {seq}, 8\ns_or_b32 s45, s45, s46\ns_lshl_b32 s46, s45, 7\ns_add_u32 s45, s45, s51\ns_mul_i32 s45, s45, {IMG}")
            a(f"s_cmp_lt_u32 {seq}, 16\ns_cselect_b32 s41, s46, {OOB}\ns_cselect_b32 s42, s45, {OOB}")
            a(f"s_lshl_b32 s45, s43, 15\ns_add_u32 s60, s45, s44\ns_add_u32 s61, s60, 4096\ns_mul_i32 s45, s43, {IMG}\ns_add_u32 s62, s45, s50")
    vm = VM()
    def aloads(tag):
        for r in range(8):
            if r % 4 == 0: a(f"s_mov_b32 m0, {'s60' if r == 0 else 's61'}\ns_nop 0")
            a(f"buffer_load_dwordx4 v{XO+r}, s[20:23], s41 offen offset:{(r&3)*1024} {opt.aflag} lds")
        vm.add(tag, 8)
    def wloads(tag):
        a("s_mov_b32 m0, s62\ns_nop 0")
        for i in range(4):
            if i == 3: a("s_mov_b32 exec_hi, 0")
            a(f"buffer_load_dwordx4 v{WO}, s[28:31], s42 offen offset:{i*1024} {opt.wflag} lds")
        a("s_mov_b32 exec_hi, -1")
        vm.add(tag, 4)
    def bload(setidx, r, so, tag=None):
        a(f"buffer_load_dwordx4 v[{S[setidx]+4*r}:{S[setidx]+4*r+3}], v{QO+r}, s[24:27], {so} offen {opt.qflag}")
        if tag: vm.add(tag)
    def conv(cs, av, p, rows, waits=None, pad=False):
        for r in rows:
            if waits: a(f"s_waitcnt vmcnt({waits(r)})")
            if opt.mix:
                for c in range(4): a(f"v_fma_mix_f32 v{cs+4*r+c}, v{cs+4*r+c}, s58, -v{Z+c} op_sel_hi:[1,0,0]")
            else:
                for c in range(4): a(f"v_cvt_f32_i32 v{cs+4*r+c}, v{cs+4*r+c}")
                for c in range(4): a(f"v_sub_f32 v{cs+4*r+c}, v{cs+4*r+c}, v{Z+c}")
            for c in range(4): a(f"v_mul_f32 v{cs+4*r+c}, v{cs+4*r+c}, v{av+r}")
            if r & 1:
                for c in range(4): a(f"v_cvt_pk_bf16_f32 v{p+4*c+(r>>1)}, v{cs+4*(r-1)+c}, v{cs+4*r+c}")
    scal(0)
    a("s_waitcnt lgkmcnt(0)")
    stamp(1)
    a.srd(20, 4, M*K*2); a.srd(24, 6, K*N*4); a.srd(84, 12, K*2); a.srd(88, 10, N*2)
    a("buffer_load_dwordx2 v[110:111], v108, s[84:87], 0 offen"); vm.add('small')
    a("buffer_load_dwordx2 v[112:113], v7, s[88:91], 0 offen"); vm.add('small')
    if opt.afirst: aloads('c0')
    for r in range(8): bload(0, r, "s47", f"r0_{r}")
    if not opt.afirst: aloads('c0')
    a.srd(28, 18, WSZ); a.srd(92, 16, 256)
    a("s_lshl_b32 s45, s38, 1\nv_add_u32 v4, s45, v4\nv_mul_u32_u24 v4, 1792, v4")
    a("v_add_u32 v5, 48, v3\nv_add_u32 v6, 72, v3")
    a("v_cmp_gt_u32 s[54:55], 16, v3\nv_cmp_gt_u32 s[56:57], 24, v3")
    for c in range(4):
        a(f"v_add_u32 v114, {4*c}, v6\nv_add_u32 v115, {(0,16,8,24)[c]}, v5\nv_add_u32 v116, {16*c}, v3")
        a(f"v_cndmask_b32 v114, v114, v115, s[56:57]\nv_cndmask_b32 v114, v114, v116, s[54:55]")
        a(f"v_lshl_add_u32 v{IW+c}, v114, 4, v4\nv_add_u32 v{LW+c}, {BBASE}, v{IW+c}")
    a(f"s_mul_i32 s41, s38, 3584\nv_lshl_add_u32 v{WO}, v2, 4, s41")
    a(f"s_lshl_b32 s41, s37, 2\ns_add_u32 s41, s41, s38\ns_lshl_b32 s41, s41, 8\ns_add_u32 s41, s41, {FLAG0}")
    a(f"v_and_b32 v5, 7, v2\nv_lshl_add_u32 v{FP}, v5, 3, s41\ns_lshl_b32 s42, s36, 3\ns_add_u32 s41, s41, s42\nv_mov_b32 v{FS}, s41")
    a(f"s_lshl_b32 s41, s37, 3\nv_mov_b32 v{NO}, s41")
    a("s_getreg_b32 s59, hwreg(HW_REG_XCC_ID, 0, 4)\ns_lshl_b32 s59, s59, 28")
    if opt.touch:
        a("v_lshrrev_b32 v5, 1, v2\nv_add_u32 v6, s36, v5\nv_and_b32 v6, 7, v6\nv_and_or_b32 v6, v5, 8, v6\nv_lshlrev_b32 v6, 7, v6\nv_and_b32 v114, 1, v2\nv_lshl_add_u32 v6, v114, 11, v6")
        a("s_lshl_b32 s41, s36, 8\ns_lshl_b32 s42, s37, 3\ns_add_u32 s41, s41, s42\ns_lshl_b32 s42, s38, 1\ns_add_u32 s41, s41, s42\ns_lshl_b32 s41, s41, 11\nv_add_u32 v6, s41, v6")
        a(f"v_cmp_le_u32 vcc, {opt.touch}, v5\nv_cmp_gt_u32 s[54:55], 16, v5\ns_nop 1\ns_and_b64 vcc, vcc, s[54:55]\nv_mov_b32 v114, 0x80000000\ns_nop 0\nv_cndmask_b32 v{TO}, v114, v6, vcc")
    a(f"s_lshl_b32 s45, s38, 10\ns_add_u32 s45, s45, {TBASE}")
    a("v_lshl_add_u32 v107, v2, 4, s45")
    a("v_lshrrev_b32 v5, 5, v2\nv_lshl_add_u32 v106, v5, 5, s45")
    if opt.mix: a("s_mov_b32 s58, 0x4b800000")
    scal(0)
    a(f"s_waitcnt vmcnt({vm.wait(['small'])})")
    a("v_lshlrev_b32 v114, 16, v110\nv_and_b32 v115, 0xffff0000, v110\nv_lshlrev_b32 v116, 16, v111\nv_and_b32 v117, 0xffff0000, v111")
    a("ds_write_b128 v107, v[114:117]")
    a(f"v_lshlrev_b32 v{Z}, 16, v112\nv_and_b32 v{Z+1}, 0xffff0000, v112\nv_lshlrev_b32 v{Z+2}, 16, v113\nv_and_b32 v{Z+3}, 0xffff0000, v113")
    a(f"ds_read_b128 v[{AV[0]}:{AV[0]+3}], v106\nds_read_b128 v[{AV[0]+4}:{AV[0]+7}], v106 offset:16")
    a(f"ds_read_b128 v[{AV[1]}:{AV[1]+3}], v106 offset:512\nds_read_b128 v[{AV[1]+4}:{AV[1]+7}], v106 offset:528")
    a("s_mov_b32 s48, s42")
    a(f"buffer_load_dwordx2 v[{NV}:{NV+1}], v{NO}, s[92:95], 0 offen sc1"); vm.add('nonce')
    if opt.a1early:
        scal(1); aloads('c1')
    a("s_waitcnt lgkmcnt(0)")
    stamp(6)
    conv(S[0], AV[0], P[0], range(8), lambda r: vm.wait([f"r0_{r}"]))
    stamp(7)
    a("s_mov_b64 exec, s[52:53]")
    for c in range(4): a(f"ds_write_b128 v{LW+c}, v[{P[0]+4*c}:{P[0]+4*c+3}]")
    for c in range(4): a(f"buffer_store_dwordx4 v[{P[0]+4*c}:{P[0]+4*c+3}], v{IW+c}, s[28:31], s48 offen {opt.pflag}")
    vm.add('st0', 4)
    a("s_mov_b64 exec, -1")
    if not opt.a1early:
        scal(1); aloads('c1')
    stamp(8)
    if 'c0' in vm.q: a(f"s_waitcnt vmcnt({vm.wait(['c0'])}) lgkmcnt(0)")
    else: a("s_waitcnt lgkmcnt(0)")
    a("s_barrier")
    stamp(9)
    a("s_mov_b32 s40, 0")
    a(f"s_waitcnt vmcnt({vm.wait(['st0', 'nonce'])})")
    stamp(10)
    a("L_nonce:")
    a(f"v_readfirstlane_b32 s45, v{NV}\ns_nop 3\ns_cmp_lg_u32 s45, 0")
    a("s_cbranch_scc1 L_gotn ;poll1")
    a(f"s_add_u32 s40, s40, 1\ns_cmp_ge_u32 s40, {opt.tmo}\ns_cbranch_scc1 L_fb1")
    a(f"buffer_load_dwordx2 v[{NV}:{NV+1}], v{NO}, s[92:95], 0 offen sc1\ns_waitcnt vmcnt(0)\ns_branch L_nonce")
    a("L_gotn:")
    a(f"v_xor_b32 v{NV+1}, s59, v{NV+1}")
    def flag(off):
        if not opt.noflag:
            a(f"s_mov_b64 exec, 1\nbuffer_store_dwordx2 v[{NV}:{NV+1}], v{FS}, s[28:31], 0 offen offset:{off} {opt.fflag}\ns_mov_b64 exec, -1"); vm.add('flag')
    def poll(lab, off, fb, tag, first=True):
        a("s_mov_b32 s40, 0")
        a(f"{lab}:")
        if first: a(f"buffer_load_dwordx2 v[{FV}:{FV+1}], v{FP}, s[28:31], 0 offen offset:{off} sc1\ns_waitcnt vmcnt(0)")
        a(f"v_xor_b32 v{FV}, v{FV}, v{NV}\nv_xor_b32 v{FV+1}, v{FV+1}, v{NV+1}\nv_or_b32 v{FV}, v{FV}, v{FV+1}\nv_cmp_ne_u32 vcc, 0, v{FV}")
        a(f"s_add_u32 s40, s40, 1\ns_nop 1\ns_cmp_ge_u32 s40, {opt.tmo}")
        a(f"s_cbranch_vccz {lab}_ok ;{tag}")
        a(f"s_cbranch_scc1 {fb}")
        if not first: a(f"buffer_load_dwordx2 v[{FV}:{FV+1}], v{FP}, s[28:31], 0 offen offset:{off} sc1\ns_waitcnt vmcnt(0)")
        a(f"s_branch {lab}")
        a(f"{lab}_ok:")
    flag(0)
    stamp(11)
    poll("L_pA", 0, "L_fb1", "poll2")
    vm.q = []
    if opt.stamps: a("s_mov_b32 s39, s40")
    stamp(4)
    wloads('c1')
    scal(2); wloads('c2'); aloads('c2')
    if opt.touch: a(f"buffer_load_dword v120, v{TO}, s[20:23], 0 offen"); vm.add('touch')
    scal(3)
    a(f"s_waitcnt vmcnt({vm.wait(['c1'])})")
    stamp(12)
    a("s_barrier")
    r1 = opt.r1
    for s in range(2, 8):
        if s == 7:
            a(f"s_waitcnt vmcnt({vm.wait(['pollB'])})")
            poll("L_pB", 128, "L_fb7", "poll3", first=False)
        wloads(f'c{s+1}'); aloads(f'c{s+1}')
        if s == r1:
            for r in range(4): bload(1, r, "s63", 'r1a')
        if s == r1 + 1:
            for r in range(4, 8): bload(1, r, "s63", 'r1b')
        if s == r1 + 2:
            a(f"s_waitcnt vmcnt({vm.wait(['r1a'])})")
            conv(S[1], AV[1], P[1], range(4))
        if s == r1 + 3:
            a(f"s_waitcnt vmcnt({vm.wait(['r1b'])})")
            conv(S[1], AV[1], P[1], range(4, 8))
            a(f"s_add_u32 s45, s36, s51\ns_add_u32 s45, s45, 8\ns_mul_i32 s45, s45, {IMG}")
            a("s_mov_b64 exec, s[52:53]")
            for c in range(4): a(f"buffer_store_dwordx4 v[{P[1]+4*c}:{P[1]+4*c+3}], v{IW+c}, s[28:31], s45 offen {opt.p1flag}")
            vm.add('st1', 4)
            a("s_mov_b64 exec, -1")
        if s == r1 + 4:
            a(f"s_waitcnt vmcnt({vm.wait(['st1'])})")
            flag(128)
        if s == 6:
            a(f"buffer_load_dwordx2 v[{FV}:{FV+1}], v{FP}, s[28:31], 0 offen offset:128 sc1"); vm.add('pollB')
        if s < 7: scal(s+2)
        else:
            a("s_mov_b32 s48, 9\ns_mov_b32 s43, 0")
            scal("s48")
        if f'c{s}' in vm.q: a(f"s_waitcnt vmcnt({vm.wait([f'c{s}'])})")
        a("s_barrier")
    if opt.stamps: stamp(13)
    a(".p2align 3")
    a("L_p2:")
    wloads('x'); aloads('x')
    a("s_add_u32 s43, s43, 1\ns_cmp_eq_u32 s43, 3\ns_cselect_b32 s43, 0, s43\ns_add_u32 s48, s48, 1")
    scal("s48")
    a("s_cmp_le_u32 s48, 16")
    a("s_waitcnt vmcnt(12)\ns_barrier")
    a("s_cbranch_scc1 L_p2")
    a("L_fin:")
    a("s_barrier")
    if opt.stamps:
        a("s_mov_b32 s40, s39")
        stamp(5); stamp(2); stamp(3)
        a("L_stamps:")
        a("s_waitcnt vmcnt(0) lgkmcnt(0)")
        a("s_getreg_b32 s45, hwreg(HW_REG_XCC_ID)")
        for i in range(14): a(f"v_mov_b32 v{8+i}, s{SL[i]}")
        a("s_sub_u32 s80, s80, s78\ns_cmp_ge_u32 s49, 4\ns_cselect_b32 s80, s40, s80\nv_mov_b32 v22, s45\nv_mov_b32 v23, s80")
        a("s_mul_i32 s41, s2, 512\nv_mov_b32 v3, s41")
        a("s_lshl_b32 s42, s49, 6\nv_add_u32 v3, s42, v3")
        for i in range(4): a(f"buffer_store_dwordx4 v[{8+4*i}:{11+4*i}], v3, s[96:99], 0 offen offset:{16*i}")
    a("s_endpgm")
    a("L_consumer:")
    a("s_memrealtime s[82:83]")
    a("v_and_b32 v3, 15, v2\nv_lshrrev_b32 v4, 4, v2")
    a("v_and_b32 v5, 7, v3\nv_xor_b32 v5, v5, v4\nv_lshlrev_b32 v5, 4, v5\nv_lshl_add_u32 v5, v3, 7, v5")
    a("s_lshl_b32 s41, s38, 13\nv_add_u32 v200, s41, v5\nv_xor_b32 v201, 64, v200")
    a("v_add_u32 v202, 0x10000, v200\nv_add_u32 v203, 0x10000, v201")
    a(f"v_mul_u32_u24 v5, 1792, v4\nv_add_u32 v5, {BBASE}, v5")
    a("v_lshl_add_u32 v204, v3, 4, v5")
    a("v_and_b32 v6, 1, v3\nv_lshrrev_b32 v7, 1, v3\nv_lshl_add_u32 v6, v6, 3, v7\nv_lshl_add_u32 v205, v6, 4, v5")
    a("v_and_b32 v6, 3, v3\nv_lshrrev_b32 v7, 2, v3\nv_lshl_add_u32 v6, v6, 2, v7\nv_lshl_add_u32 v206, v6, 4, v5")
    SC = 208
    a("s_lshl_b32 s41, s36, 8\ns_lshl_b32 s42, s38, 6\ns_add_u32 s41, s41, s42\ns_mul_i32 s41, s41, 7168\ns_mul_i32 s42, s37, 224\ns_add_u32 s41, s41, s42")
    a("v_mul_u32_u24 v5, 28672, v4\nv_add_u32 v5, s41, v5")
    a("v_lshl_add_u32 v216, v3, 3, v5\nv_lshl_add_u32 v217, v3, 2, v5\nv_lshl_add_u32 v218, v3, 1, v5")
    a("v_lshl_add_u32 v6, v3, 3, s42\nv_lshl_add_u32 v7, v3, 2, s42\nv_lshl_add_u32 v8, v3, 1, s42")
    a("s_lshl_b32 s43, s37, 3\nv_mov_b32 v9, s43")
    a("s_or_b32 s44, s36, s38")
    a("s_waitcnt lgkmcnt(0)")
    stamp(1)
    a("s_cmp_lg_u32 s44, 0\ns_cbranch_scc1 L_nonon")
    a.srd(92, 16, 256)
    a("s_or_b32 s82, s82, 1\nv_mov_b32 v10, s82\nv_mov_b32 v11, s83")
    if not opt.nononce:
        a("s_mov_b64 exec, 1\nbuffer_store_dwordx2 v[10:11], v9, s[92:95], 0 offen sc1\ns_mov_b64 exec, -1")
    a("L_nonon:")
    a.srd(84, 8, N*2); a.srd(32, 14, M*N*2)
    a("buffer_load_dwordx2 v[220:221], v6, s[84:87], 0 offen")
    a("buffer_load_dword v222, v7, s[84:87], 0 offen offset:128")
    a("buffer_load_ushort v223, v8, s[84:87], 0 offen offset:192")
    for i in range(112): a(f"v_mov_b32 v{i}, 0")
    a("s_waitcnt vmcnt(0)")
    a(f"v_lshlrev_b32 v{SC}, 16, v220\nv_and_b32 v{SC+1}, 0xffff0000, v220\nv_lshlrev_b32 v{SC+2}, 16, v221\nv_and_b32 v{SC+3}, 0xffff0000, v221")
    a(f"v_lshlrev_b32 v{SC+4}, 16, v222\nv_and_b32 v{SC+5}, 0xffff0000, v222\nv_lshlrev_b32 v{SC+6}, 16, v223")
    a("s_mov_b32 s40, 0")
    if opt.cprio: a(f"s_setprio {opt.cprio}")
    a("s_barrier")
    stamp(2, True)
    F = (112, 156)
    def rd_list(fs, s, slot):
        base = F[fs]; l = []
        va = (200 if slot < 2 else 202) + s
        ao = 32768 if slot == 1 else 0
        for mt in range(4): l.append(f"ds_read_b128 v[{base+4*mt}:{base+4*mt+3}], v{va} offset:{ao+2048*mt}")
        for j in range(7):
            vb = 204 if j < 4 else (205 if j < 6 else 206)
            l.append(f"ds_read_b128 v[{base+16+4*j}:{base+19+4*j}], v{vb} offset:{IMG*slot+7168*s+256*j}")
        return [l[0], l[4], l[1], l[2], l[3]] + l[5:]
    for r in rd_list(0, 0, 0): a(r)
    a("s_waitcnt lgkmcnt(0)")
    a(".p2align 3")
    a("L_cons:")
    for slot in range(3):
        for s in range(2):
            base = F[s]
            reads = rd_list(1, 1, slot) if s == 0 else rd_list(0, 0, (slot+1) % 3)
            idx = 0
            for j in range(7):
                for mt in range(4):
                    acc = 4*(mt*7+j)
                    if not opt.nomfma:
                        a(f"v_mfma_f32_16x16x32_bf16 v[{acc}:{acc+3}], v[{base+4*mt}:{base+4*mt+3}], v[{base+16+4*j}:{base+19+4*j}], v[{acc}:{acc+3}]")
                    if idx % 2 == 0 and reads: a(reads.pop(0))
                    if idx == 24 and s == 1 and slot == 0: a("s_add_u32 s40, s40, 1\ns_cmp_eq_u32 s40, 6")
                    idx += 1
            a("s_waitcnt lgkmcnt(0)")
            if s == 0: a("s_barrier")
            elif slot == 0: a("s_cbranch_scc1 L_epi")
            elif slot == 1: a("s_nop 0")
            else: a("s_branch L_cons")
    a("L_epi:")
    stamp(3, True)
    a("s_nop 7\ns_nop 7")
    st = "nt" if opt.nt else ""
    for mt in range(4):
        for r in range(4):
            regs = [4*(mt*7+j)+r for j in range(7)]
            for j in range(7): a(f"v_mul_f32 v{regs[j]}, v{SC+j}, v{regs[j]}")
            tb = 112 + 4*((mt*4+r) % 16)
            a(f"v_cvt_pk_bf16_f32 v{tb}, v{regs[0]}, v{regs[1]}\nv_cvt_pk_bf16_f32 v{tb+1}, v{regs[2]}, v{regs[3]}")
            a(f"v_cvt_pk_bf16_f32 v{tb+2}, v{regs[4]}, v{regs[5]}\nv_cvt_pk_bf16_f32 v{tb+3}, v{regs[6]}, v{regs[6]}")
            a(f"s_mov_b32 s41, {(mt*16+r)*7168}")
            if not opt.nostore:
                a(f"buffer_store_dwordx2 v[{tb}:{tb+1}], v216, s[32:35], s41 offen {st}")
                a(f"buffer_store_dword v{tb+2}, v217, s[32:35], s41 offen offset:128 {st}")
                a(f"buffer_store_short v{tb+3}, v218, s[32:35], s41 offen offset:192 {st}")
    stamp(4)
    if opt.stamps:
        a("s_waitcnt vmcnt(0)")
        stamp(5)
        a("s_branch L_stamps")
    a("s_endpgm")
    a("L_pfend:")
    a("L_fb1:")
    a("s_mov_b32 s48, 2\ns_mov_b32 s43, 2\ns_mov_b32 s63, 1\nv_add_u32 v106, 64, v106")
    a("s_branch L_fbl")
    a("L_fb7:")
    scal(8); aloads('x')
    a("s_waitcnt vmcnt(8)\ns_barrier")
    a("s_mov_b32 s48, 9\ns_mov_b32 s43, 0\ns_mov_b32 s63, 2\nv_add_u32 v106, 512, v106")
    a("L_fbl:")
    a(f"s_sub_u32 s46, s48, 1\ns_add_u32 s45, s36, s46\ns_and_b32 s45, s45, 7\ns_and_b32 s46, s46, 8\ns_or_b32 s45, s45, s46\ns_mul_i32 s47, s45, {QCH}")
    for r in range(8): bload(0, r, "s47")
    scal("s48")
    aloads('x')
    a(f"ds_read_b128 v[{AV[0]}:{AV[0]+3}], v106\nds_read_b128 v[{AV[0]+4}:{AV[0]+7}], v106 offset:16")
    a(f"s_mul_i32 s45, s63, {IMG}")
    for c in range(4): a(f"v_add_u32 v{114+c}, s45, v{LW+c}")
    a("s_waitcnt vmcnt(8) lgkmcnt(0)")
    conv(S[0], AV[0], P[0], range(8))
    a("s_mov_b64 exec, s[52:53]")
    for c in range(4): a(f"ds_write_b128 v{114+c}, v[{P[0]+4*c}:{P[0]+4*c+3}]")
    a("s_mov_b64 exec, -1")
    a("v_add_u32 v106, 64, v106\ns_mov_b32 s63, s43")
    a("s_add_u32 s43, s43, 1\ns_cmp_eq_u32 s43, 3\ns_cselect_b32 s43, 0, s43\ns_add_u32 s48, s48, 1\ns_cmp_le_u32 s48, 16")
    a("s_waitcnt lgkmcnt(0)\ns_barrier")
    a("s_cbranch_scc1 L_fbl")
    if opt.stamps: a("s_mov_b32 s39, 9999")
    a("s_branch L_fin")
    a("L_end:")
    a("s_endpgm")
    return a

def parse(argv=None):
    ap = argparse.ArgumentParser()
    ap.add_argument('out')
    ap.add_argument('--name', default=NAME + '_kernel')
    ap.add_argument('--mapping', default='8x4')
    for f, d in (('stamps',0),('pf',1),('nt',1),('cprio',0),('nomfma',0),('nostore',0),('mix',0),('touch',3),('tmo',128),('nononce',0),('noflag',0),
                 ('afirst',1),('a1early',1),('r1',2)):
        ap.add_argument('--' + f, type=int, default=d)
    for f, d in (('aflag',''),('wflag','sc1'),('pflag',''),('p1flag',''),('qflag',''),('fflag','')): ap.add_argument('--' + f, default=d)
    return ap.parse_args(argv)
if __name__ == '__main__':
    opt = parse()
    gen(opt).write(opt.out, single=True)
```

```python
import sys, argparse
from glib import *

def interleave(valu, other, pat=(2, 1)):
    out = []
    nv, no = len(valu), len(other)
    iv = io = 0
    while iv < nv or io < no:
        take_o = io < no and (iv >= nv or io * max(nv, 1) <= iv * no)
        if take_o:
            out.append(other[io]); io += 1
        else:
            for _ in range(pat[0]):
                if iv < nv:
                    out.append(valu[iv]); iv += 1
    return out

def gen(opt):
    a = Asm()
    KN = opt.name
    a.launch(KN, 256, 512, 163840)
    a.kstart(KN, 256, 102)
    stamps = opt.stamps
    def stamp(i):
        if stamps:
            a(f"s_memrealtime s[{64+2*i}:{65+2*i}]")
            if i == 2: a("s_memtime s[78:79]")
            if i == 3: a("s_memtime s[80:81]")
    stamp(0)
    a("s_cmp_ge_u32 s2, 0x100\ns_cbranch_scc1 L_end")
    a("s_load_dwordx8 s[4:11], s[0:1], 0\ns_load_dwordx4 s[12:15], s[0:1], 32")
    if stamps: a("s_load_dwordx2 s[18:19], s[0:1], 56")
    a("v_lshrrev_b32 v1, 6, v0\nv_and_b32 v2, 63, v0")
    a("v_readfirstlane_b32 s38, v1")
    if stamps: a("s_nop 3\ns_mov_b32 s49, s38")
    a("s_and_b32 s39, s2, 7\ns_lshr_b32 s40, s2, 3")
    if opt.mapping == '8x4':
        a("s_and_b32 s36, s40, 7\ns_lshr_b32 s37, s40, 3\ns_lshl_b32 s39, s39, 2\ns_add_u32 s37, s37, s39")
        a("s_lshr_b32 s50, s40, 3")
    else:
        a("s_and_b32 s36, s40, 3\ns_and_b32 s41, s39, 1\ns_lshl_b32 s41, s41, 2\ns_add_u32 s36, s36, s41")
        a("s_lshr_b32 s37, s40, 2\ns_lshr_b32 s41, s39, 1\ns_lshl_b32 s41, s41, 3\ns_add_u32 s37, s37, s41")
        a("s_lshr_b32 s50, s40, 3")
    a("s_cmp_ge_u32 s38, 4\ns_cbranch_scc1 L_prod")
    if opt.pf:
        a("s_getpc_b64 s[42:43]\nL_pc0:\ns_sub_u32 s42, s42, L_pc0-" + KN + "\ns_subb_u32 s43, s43, 0")
        a("v_lshlrev_b32 v3, 7, v2\ns_lshl_b32 s41, s38, 13\nv_add_u32 v3, s41, v3")
        a(f"v_min_u32 v3, L_end-{KN}, v3")
        a("v_mov_b32 v5, s43\nv_add_co_u32 v4, vcc, s42, v3\ns_nop 1\nv_addc_co_u32 v5, vcc, 0, v5, vcc")
        a("global_load_dword v255, v[4:5], off")
    a("v_and_b32 v3, 15, v2\nv_lshrrev_b32 v4, 4, v2")
    a("v_and_b32 v5, 7, v3\nv_xor_b32 v5, v5, v4\nv_lshlrev_b32 v5, 4, v5\nv_lshl_add_u32 v5, v3, 7, v5")
    a("s_lshl_b32 s41, s38, 13\nv_add_u32 v200, s41, v5\nv_xor_b32 v201, 64, v200")
    a("v_add_u32 v202, 0x20000, v5\nv_xor_b32 v203, 64, v202")
    a("v_lshrrev_b32 v5, 1, v3\nv_xor_b32 v5, v5, v4\nv_lshlrev_b32 v5, 4, v5\nv_lshl_add_u32 v5, v3, 7, v5")
    a("v_add_u32 v204, 0x20000, v5\nv_xor_b32 v205, 64, v204")
    a("s_lshl_b32 s41, s36, 8\ns_lshl_b32 s42, s38, 6\ns_add_u32 s41, s41, s42\ns_mul_i32 s41, s41, 7168\ns_mul_i32 s42, s37, 224\ns_add_u32 s41, s41, s42")
    a("v_mul_u32_u24 v5, 28672, v4\nv_add_u32 v5, s41, v5")
    a("v_lshl_add_u32 v216, v3, 3, v5\nv_lshl_add_u32 v217, v3, 2, v5\nv_lshl_add_u32 v218, v3, 1, v5")
    a("v_lshl_add_u32 v6, v3, 3, s42\nv_lshl_add_u32 v7, v3, 2, s42\nv_lshl_add_u32 v8, v3, 1, s42")
    a("s_waitcnt lgkmcnt(0)")
    stamp(1)
    a.srd(28, 8, N*2); a.srd(32, 14, M*N*2)
    a("buffer_load_dwordx2 v[220:221], v6, s[28:31], 0 offen")
    a("buffer_load_dword v222, v7, s[28:31], 0 offen offset:128")
    a("buffer_load_ushort v223, v8, s[28:31], 0 offen offset:192")
    for i in range(112): a(f"v_mov_b32 v{i}, 0")
    a("s_waitcnt vmcnt(0)")
    a("v_lshlrev_b32 v206, 16, v220\nv_and_b32 v207, 0xffff0000, v220\nv_lshlrev_b32 v208, 16, v221\nv_and_b32 v209, 0xffff0000, v221")
    a("v_lshlrev_b32 v210, 16, v222\nv_and_b32 v211, 0xffff0000, v222\nv_lshlrev_b32 v212, 16, v223")
    a("s_mov_b32 s40, 0")
    if opt.cprio: a(f"s_setprio {opt.cprio}")
    a("s_barrier")
    stamp(2)
    F = (112, 156)
    def rd_list(fs, s):
        base = F[fs]; l = []
        va = 200 + s
        for mt in range(4): l.append(f"ds_read_b128 v[{base+4*mt}:{base+4*mt+3}], v{va} offset:{2048*mt}")
        for j in range(7):
            vb = (202 if j < 4 else 204) + s
            l.append(f"ds_read_b128 v[{base+16+4*j}:{base+19+4*j}], v{vb} offset:{2048*j}")
        return [l[0], l[4], l[1], l[2], l[3]] + l[5:]
    for r in rd_list(0, 0): a(r)
    a("s_waitcnt lgkmcnt(0)")
    a(".p2align 3")
    a("L_cons:")
    for s in range(2):
        base = F[s]
        reads = rd_list(1 - s, 1 - s)
        extra = []
        if s == 0:
            extra = ["v_add_u32 v200, 0x8000, v200", "v_add_u32 v201, 0x8000, v201", "v_and_b32 v200, 0x1ffff, v200", "v_and_b32 v201, 0x1ffff, v201",
                     "v_xor_b32 v202, 0x4000, v202", "v_xor_b32 v203, 0x4000, v203", "v_xor_b32 v204, 0x4000, v204", "v_xor_b32 v205, 0x4000, v205"]
        else:
            extra = ["s_add_u32 s40, s40, 1", "s_cmp_lt_u32 s40, 16"]
        idx = 0
        for j in range(7):
            for mt in range(4):
                acc = 4*(mt*7+j)
                if not opt.nomfma:
                    a(f"v_mfma_f32_16x16x32_bf16 v[{acc}:{acc+3}], v[{base+4*mt}:{base+4*mt+3}], v[{base+16+4*j}:{base+19+4*j}], v[{acc}:{acc+3}]")
                if idx % 2 == 0 and reads: a(reads.pop(0))
                elif idx >= 21 and extra:
                    a(extra.pop(0))
                    if extra and s == 0 and len(extra) > 27 - idx - 0: a(extra.pop(0))
                idx += 1
        for e in extra: a(e)
        a("s_waitcnt lgkmcnt(0)")
        if s == 0: a("s_barrier")
        else: a("s_cbranch_scc1 L_cons")
    stamp(3)
    a("s_nop 7\ns_nop 7")
    st = "nt" if opt.nt else ""
    t = 224
    for mt in range(4):
        for r in range(4):
            regs = [4*(mt*7+j)+r for j in range(7)]
            for j in range(7): a(f"v_mul_f32 v{regs[j]}, v{206+j}, v{regs[j]}")
            tb = 112 + 4*((mt*4+r) % 16)
            a(f"v_cvt_pk_bf16_f32 v{tb}, v{regs[0]}, v{regs[1]}\nv_cvt_pk_bf16_f32 v{tb+1}, v{regs[2]}, v{regs[3]}")
            a(f"v_cvt_pk_bf16_f32 v{tb+2}, v{regs[4]}, v{regs[5]}\nv_cvt_pk_bf16_f32 v{tb+3}, v{regs[6]}, v{regs[6]}")
            a(f"s_mov_b32 s41, {(mt*16+r)*7168}")
            if not opt.nostore:
                a(f"buffer_store_dwordx2 v[{tb}:{tb+1}], v216, s[32:35], s41 offen {st}")
                a(f"buffer_store_dword v{tb+2}, v217, s[32:35], s41 offen offset:128 {st}")
                a(f"buffer_store_short v{tb+3}, v218, s[32:35], s41 offen offset:192 {st}")
    stamp(4)
    if stamps:
        a("s_waitcnt vmcnt(0)")
        stamp(5)
        a("s_branch L_stamps")
    a("s_endpgm")
    a("L_prod:")
    a("s_sub_u32 s38, s38, 4")
    S = (8, 40); P = 72; AV = (88, 124); Z = 96; XO = 132; QO = 140
    a("v_and_b32 v3, 31, v2\nv_lshrrev_b32 v4, 5, v2")
    a("v_lshrrev_b32 v5, 3, v2\nv_and_b32 v6, 7, v2\nv_xor_b32 v6, v6, v5\nv_lshlrev_b32 v6, 4, v6\nv_lshl_add_u32 v100, v5, 11, v6")
    a(f"s_lshl_b32 s41, s36, 19\ns_lshl_b32 s42, s38, 17\ns_add_u32 s41, s41, s42\nv_add_u32 v{XO}, s41, v100")
    for r in range(1, 8): a(f"v_add_u32 v{XO+r}, {r*16384 - (r&3)*1024}, v{XO}")
    a(f"v_mul_u32_u24 v5, {8*N*4}, v4\nv_lshl_add_u32 v5, v3, 4, v5")
    a(f"s_mul_i32 s41, s38, {16*N*4}\ns_mul_i32 s42, s37, 448\ns_add_u32 s41, s41, s42\nv_add_u32 v5, s41, v5")
    a(f"v_cmp_gt_u32 vcc, 28, v3\nv_mov_b32 v6, 0x80000000\ns_nop 0\nv_cndmask_b32 v{QO}, v6, v5, vcc\ns_mov_b64 s[52:53], vcc")
    for r in range(1, 8): a(f"v_add_u32 v{QO+r}, {r*N*4}, v{QO}")
    a("s_mul_i32 s42, s37, 224\nv_lshl_add_u32 v7, v3, 3, s42")
    if opt.krot:
        a(f"s_mul_i32 s59, s36, {opt.krot}\ns_and_b32 s59, s59, 15")
    else:
        a("s_mov_b32 s59, 0")
    a("v_lshrrev_b32 v5, 2, v2\nv_add_u32 v5, s59, v5\nv_and_b32 v5, 15, v5\nv_and_b32 v6, 3, v2\nv_lshlrev_b32 v6, 3, v6\nv_lshl_add_u32 v5, v5, 7, v6\ns_lshl_b32 s41, s38, 5\nv_add_u32 v108, s41, v5")
    a("s_lshl_b32 s44, s38, 13")
    a("s_waitcnt lgkmcnt(0)")
    stamp(1)
    a.srd(20, 4, M*K*2); a.srd(24, 6, K*N*4); a.srd(28, 12, K*2); a.srd(32, 10, N*2)
    def bload(setidx, r): return f"buffer_load_dwordx4 v[{S[setidx]+4*r}:{S[setidx]+4*r+3}], v{QO+r}, s[24:27], s42 offen {opt.bflag}"
    def aload(r): return f"buffer_load_dwordx4 v{XO+r}, s[20:23], s41 offen offset:{(r&3)*1024} {opt.aflag} lds"
    a("buffer_load_dwordx2 v[110:111], v108, s[28:31], 0 offen")
    a("buffer_load_dwordx2 v[112:113], v7, s[32:35], 0 offen")
    a(f"s_lshl_b32 s41, s59, 7\ns_mul_i32 s42, s59, {64*N*4}\ns_mov_b32 s43, s44\ns_mov_b32 m0, s44")
    order = []
    for r in range(8):
        if not opt.noB: order.append(('b', r))
        if not opt.noA: order.append(('a', r))
    for (k, r) in order:
        if k == 'a' and r == 4: a("s_add_u32 m0, s43, 4096\ns_nop 0")
        a(bload(0, r) if k == 'b' else aload(r))
    NE = len(order)
    a("s_lshl_b32 s45, s38, 1\nv_add_u32 v4, s45, v4")
    a("v_subrev_u32 v5, 16, v3\nv_subrev_u32 v6, 24, v3")
    a("v_cmp_gt_u32 s[54:55], 16, v3\nv_cmp_gt_u32 s[56:57], 24, v3")
    for c in range(4):
        a(f"v_lshlrev_b32 v114, 2, v6\nv_add_u32 v114, {96+c}, v114\nv_lshlrev_b32 v115, 1, v6\nv_add_u32 v115, {c>>1}, v115")
        a(f"v_lshlrev_b32 v116, 1, v5\nv_add_u32 v116, {64+16*(c&1)+(c>>1)}, v116")
        a(f"v_cndmask_b32 v114, v114, v116, s[56:57]\nv_cndmask_b32 v115, v115, v5, s[56:57]")
        a(f"v_add_u32 v116, {16*c}, v3\nv_and_b32 v117, 7, v3")
        a(f"v_cndmask_b32 v114, v114, v116, s[54:55]\nv_cndmask_b32 v115, v115, v117, s[54:55]")
        a("v_xor_b32 v115, v115, v4\nv_and_b32 v115, 7, v115\nv_lshlrev_b32 v115, 4, v115\nv_lshl_add_u32 v114, v114, 7, v115")
        a(f"v_add_u32 v{102+c}, 0x20000, v114")
    a("s_lshr_b32 s45, s38, 1\ns_lshl_b32 s45, s45, 14\ns_and_b32 s46, s38, 1\ns_lshl_b32 s46, s46, 10\ns_add_u32 s45, s45, s46\ns_add_u32 s45, s45, 0x23800")
    a("v_lshl_add_u32 v107, v2, 4, s45")
    a("v_lshrrev_b32 v5, 5, v2\nv_lshl_add_u32 v106, v5, 5, s45")
    a(f"s_waitcnt vmcnt({NE})")
    a("v_lshlrev_b32 v114, 16, v110\nv_and_b32 v115, 0xffff0000, v110\nv_lshlrev_b32 v116, 16, v111\nv_and_b32 v117, 0xffff0000, v111")
    a("ds_write_b128 v107, v[114:117]")
    a(f"v_lshlrev_b32 v{Z}, 16, v112\nv_and_b32 v{Z+1}, 0xffff0000, v112\nv_lshlrev_b32 v{Z+2}, 16, v113\nv_and_b32 v{Z+3}, 0xffff0000, v113")
    if opt.mix: a("s_mov_b32 s58, 0x4b800000")
    a(f"ds_read_b128 v[{AV[0]}:{AV[0]+3}], v106\nds_read_b128 v[{AV[0]+4}:{AV[0]+7}], v106 offset:16")
    def advance():
        return ["s_add_u32 s48, s48, 1", "s_add_u32 s45, s48, s59", "s_and_b32 s45, s45, 15", "s_lshl_b32 s46, s45, 7", f"s_mul_i32 s45, s45, {64*N*4}",
                "s_cmp_lt_u32 s48, 16", "s_cselect_b32 s60, s46, 0x40000000", "s_cselect_b32 s61, s45, 0x40000000",
                "s_and_b32 s45, s48, 3", "s_lshl_b32 s45, s45, 15", "s_add_u32 s62, s45, s44"]
    a("s_mov_b32 s48, 0")
    for l in advance(): a(l)
    a("s_mov_b32 s40, 0\ns_movk_i32 s63, 0x3ff")
    a("s_waitcnt lgkmcnt(0)")
    a(".p2align 3")
    a("L_prodl:")
    for u in range(2):
        cs = S[u]; ls = 1 - u; av = AV[u]; avn = AV[1-u]
        rows = []
        for r in range(8):
            v = []
            if not opt.noconv:
                if opt.mix:
                    for c in range(4): v.append(f"v_fma_mix_f32 v{cs+4*r+c}, v{cs+4*r+c}, s58, -v{Z+c} op_sel_hi:[1,0,0]")
                else:
                    for c in range(4): v.append(f"v_cvt_f32_i32 v{cs+4*r+c}, v{cs+4*r+c}")
                    for c in range(4): v.append(f"v_sub_f32 v{cs+4*r+c}, v{cs+4*r+c}, v{Z+c}")
                for c in range(4): v.append(f"v_mul_f32 v{cs+4*r+c}, v{cs+4*r+c}, v{av+r}")
                if r & 1:
                    for c in range(4): v.append(f"v_cvt_pk_bf16_f32 v{P+4*c+(r>>1)}, v{cs+4*(r-1)+c}, v{cs+4*r+c}")
            rows.append(v)
        valu = []
        for r in range(8): valu += [(r, x) for x in rows[r]]
        nv = len(valu)
        ntail = opt.tail
        nmid = NE - ntail
        items = []
        items.append(('t', "s_mov_b32 s41, s60\ns_mov_b32 s42, s61\ns_add_u32 s76, s62, 4096\ns_mov_b32 m0, s62"))
        sal = advance()
        if u == 1: pass
        li = 0; seen = set()
        for i, (r, x) in enumerate(valu):
            while li < nmid and li * max(nv, 1) <= i * nmid:
                items.append(('m',) + order[li]); li += 1
            if r not in seen:
                seen.add(r); items.append(('w', r))
            items.append(('t', x))
            if i >= 8 and i % 4 == 1 and sal: items.append(('t', sal.pop(0)))
        while li < nmid: items.append(('m',) + order[li]); li += 1
        for x in sal: items.append(('t', x))
        wr = [f"ds_write_b128 v{102+c}, v[{P+4*c}:{P+4*c+3}] offset:{16384*u}" for c in range(4)] if not opt.noconv else []
        items.append(('t', "s_mov_b64 exec, s[52:53]"))
        for w in wr: items.append(('t', w))
        items.append(('t', "s_mov_b64 exec, -1"))
        off = 64 if u == 0 else 128
        if u == 1: items.append(('t', "v_add_u32 v118, 128, v106\nv_bfi_b32 v106, s63, v118, v106"))
        o2 = 64 if u == 0 else 0
        items.append(('t', f"ds_read_b128 v[{avn}:{avn+3}], v106 offset:{o2}\nds_read_b128 v[{avn+4}:{avn+7}], v106 offset:{o2+16}"))
        while li < NE: items.append(('m',) + order[li]); li += 1
        if u == 1: items.append(('t', "s_add_u32 s40, s40, 1\ns_cmp_lt_u32 s40, 8"))
        items.append(('t', f"s_waitcnt vmcnt({NE}) lgkmcnt(0)\ns_barrier"))
        cnt = 0
        for it in items:
            if it[0] == 't': a(it[1])
            elif it[0] == 'm':
                if it[1] == 'a' and it[2] == 4: a("s_mov_b32 m0, s76\ns_nop 0")
                a(bload(ls, it[2]) if it[1] == 'b' else aload(it[2])); cnt += 1
            else:
                if not opt.noB:
                    pos = order.index(('b', it[1]))
                    a(f"s_waitcnt vmcnt({NE - 1 - pos + cnt})")
    a("s_cbranch_scc1 L_prodl")
    a("s_barrier")
    if stamps:
        stamp(2); a("s_waitcnt lgkmcnt(0)"); stamp(3); stamp(4); stamp(5)
        a("L_stamps:")
        a("s_waitcnt vmcnt(0) lgkmcnt(0)")
        a("s_cmp_ge_u32 s49, 1\ns_cbranch_scc1 L_end")
        a("s_load_dwordx2 s[18:19], s[0:1], 48\ns_waitcnt lgkmcnt(0)")
        a.srd(20, 18, 256)
        a("v_mov_b32 v3, 0\ns_mov_b64 exec, 1")
        for i in range(6):
            a(f"s_not_b32 s45, s{64+2*i}\nv_mov_b32 v8, s45\nv_mov_b32 v9, s{64+2*i}\nv_mov_b32 v3, {8*i}")
            a("buffer_atomic_umax v8, v3, s[20:23], 0 offen\nbuffer_atomic_umax v9, v3, s[20:23], 0 offen offset:4\ns_waitcnt vmcnt(0)")
        a("s_sub_u32 s80, s80, s78\ns_lshr_b32 s80, s80, 10\nv_mov_b32 v8, s80\nv_mov_b32 v3, 48\nbuffer_atomic_add v8, v3, s[20:23], 0 offen")
        a("s_sub_u32 s80, s70, s68\nv_mov_b32 v8, s80\nv_mov_b32 v3, 52\nbuffer_atomic_add v8, v3, s[20:23], 0 offen")
        a("s_sub_u32 s80, s68, s64\nv_mov_b32 v8, s80\nv_mov_b32 v3, 56\nbuffer_atomic_add v8, v3, s[20:23], 0 offen")
        a("s_sub_u32 s80, s74, s70\nv_mov_b32 v8, s80\nv_mov_b32 v3, 60\nbuffer_atomic_add v8, v3, s[20:23], 0 offen")
    a("L_end:")
    a("s_endpgm")
    return a

if __name__ == '__main__':
    ap = argparse.ArgumentParser()
    ap.add_argument('out')
    ap.add_argument('--name', default=NAME + '_kernel')
    ap.add_argument('--mapping', default='8x4')
    ap.add_argument('--stamps', type=int, default=0)
    ap.add_argument('--pf', type=int, default=1)
    ap.add_argument('--nt', type=int, default=1)
    ap.add_argument('--mix', type=int, default=0)
    ap.add_argument('--rot', type=int, default=0)
    ap.add_argument('--cprio', type=int, default=0)
    ap.add_argument('--tail', type=int, default=3)
    for f in ('own', 'tA', 'tB', 'krot'): ap.add_argument('--' + f, type=int, default=0)
    ap.add_argument('--aflag', default='')
    ap.add_argument('--bflag', default='')
    for f in ('nomfma', 'noA', 'noB', 'noconv', 'nostore'): ap.add_argument('--' + f, type=int, default=0)
    opt = ap.parse_args()
    a = gen(opt)
    a.lines = [l for l in a.lines if l is not None]
    a.write(opt.out, single=True)
```

```python
import sys, argparse
from glib import *

IMG = 14336
BBASE = 98304; TBASE = BBASE + 3*IMG; LDS = TBASE + 4096
FLAG0 = 32*16*IMG; WSZ = FLAG0 + 128*256
OOB = "0x40000000"; VOOB = "0x80000000"
QCH = 64*N*4


class VM:
    def __init__(self): self.q = []
    def add(self, tag, n=1): self.q += [tag]*n
    def wait(self, tags):
        if not any(t in tags for t in self.q): return None
        last = max(i for i, t in enumerate(self.q) if t in tags)
        n = len(self.q) - 1 - last
        self.q = self.q[last+1:]
        assert n <= 63
        return n


def gen(opt):
    a = Asm()
    a.header = ["; " + l if l else ";" for l in """
out[m,n] = s[n] * sum_k x[m,k] * bf16((q[k,n] - z[n]) * a[k])      (fp32 accumulation; a[] folded into the weights, s[] into the epilogue)

One workgroup = one 256 x 112 output tile, K in 16 chunks of 64 through a 3-slot LDS ring.
  waves 0-3: MFMA waves, 64 x 112 each (v_mfma_f32_16x16x32_bf16). The last three chunks are run for rows 0-31 first and then for
             rows 32-63 of each wave, so that half of the output is scaled, packed and stored under the remaining MFMAs.
  waves 4-7: loader waves (LDS-DMA of x and of dequantised weight chunks), one s_barrier per chunk.
The 8 workgroups that share a column tile each dequantise two chunks (used locally first) and pass them on through d_ws:
  data stores -> s_waitcnt vmcnt -> per-wave hand-off word; readers poll these words, then load the data past their L1.
  The word is a launch-unique tag (a clock value the group's first member puts into the zeroed d_debug) combined with the writer's XCD id,
  so a reader only accepts data written in this launch through its own L2. If the tag or a word does not arrive within a bounded number
  of polls (other placement, members not resident), that loader wave dequantises its share of every remaining chunk itself.
Generated by a script of mine (schedule, register map and s_waitcnt counts come from the generator).
""".strip("\n").split("\n")]
    KN = opt.name
    a.launch(KN, 256, 512, LDS)
    a.kstart(KN, 256, 102)
    SL = [64, 66, 68, 70, 72, 74, 76, 4, 6, 8, 10, 12, 14, 16]
    def stamp(i, cyc=False, mode=None):
        if opt.stamps and (mode is None or mode == opt.st2):
            a(f"s_memrealtime s[{SL[i]}:{SL[i]+1}]")
            if cyc and i == 2: a("s_memtime s[78:79]")
            if cyc and i == 3: a("s_memtime s[80:81]")
    def stamp_init():
        if opt.stamps:
            a("s_waitcnt lgkmcnt(0)")
            for r in range(68, 82): a(f"s_mov_b32 s{r}, 0")
    def cm(t): a("; " + t)
    def colgroups(A, B, C, T):
        if not opt.align:
            a(f"s_mov_b32 {A}, 0\ns_movk_i32 {B}, 128\ns_movk_i32 {C}, 192"); return
        a(f"s_and_b32 {T}, s37, 3\ns_lshl_b32 {A}, {T}, 5\ns_add_u32 {B}, {A}, 128\ns_sub_u32 {C}, {A}, 64\ns_cmp_ge_u32 {T}, 2\ns_cselect_b32 {B}, {C}, {B}")
        a(f"s_bitcmp1_b32 {T}, 0\ns_cselect_b32 {C}, 0, 192")

    stamp(0)
    a("s_cmp_ge_u32 s2, 0x100\ns_cbranch_scc1 L_end")
    a("s_load_dwordx16 s[4:19], s[0:1], 0")
    a("v_lshrrev_b32 v1, 6, v0\nv_and_b32 v2, 63, v0")
    a("v_readfirstlane_b32 s38, v1 ; wave")
    a("s_nop 0")
    if opt.pf:
        cm("one wave pulls some of the kernel's code lines into L2 (4 lines per workgroup; the workgroups of an XCD cover 16 KB)")
        a("s_cmp_lg_u32 s38, 1\ns_cbranch_scc1 L_nopf")
        a("s_getpc_b64 s[42:43]\nL_pc0:\ns_sub_u32 s42, s42, L_pc0-" + KN + "\ns_subb_u32 s43, s43, 0")
        if opt.pf == 1:
            a("v_lshlrev_b32 v3, 7, v2")
            for i in range(2):
                if i: a("v_add_u32 v3, 8192, v3")
                a(f"v_min_u32 v3, L_pfend-{KN}, v3")
                a("v_mov_b32 v5, s43\nv_add_co_u32 v4, vcc, s42, v3\ns_nop 1\nv_addc_co_u32 v5, vcc, 0, v5, vcc")
                a(f"global_load_dword v{255-i}, v[4:5], off")
        else:
            a(f"s_lshr_b32 s41, s2, 3\ns_lshl_b32 s41, s41, 2\nv_add_lshl_u32 v3, v2, s41, 7\nv_min_u32 v3, L_pfend-{KN}, v3")
            a("v_mov_b32 v5, s43\nv_add_co_u32 v4, vcc, s42, v3\ns_mov_b64 exec, 15\ns_nop 0\nv_addc_co_u32 v5, vcc, 0, v5, vcc")
            a("global_load_dword v255, v[4:5], off\ns_mov_b64 exec, -1")
        a("L_nopf:")
    cm("tile: workgroups b, b+8, ... share an XCD under round-robin placement (speed only): s36 = row tile, s37 = column tile")
    a("s_and_b32 s39, s2, 7\ns_lshr_b32 s40, s2, 3")
    if opt.mapping == '8x4':
        a("s_and_b32 s36, s40, 7\ns_lshr_b32 s37, s40, 3\ns_lshl_b32 s39, s39, 2\ns_add_u32 s37, s37, s39")
    else:
        a("s_mov_b32 s36, s39\ns_mov_b32 s37, s40")
    if opt.stamps: a("s_mov_b32 s49, s38")
    if opt.pt:
        cm("one wave touches one word in each address range that is first used later, so that the translations are fetched now")
        a("s_cmp_lg_u32 s38, 2\ns_cbranch_scc1 L_nopt")
        a(f"s_mul_i32 s41, s37, {16*IMG}\ns_add_u32 s42, s41, {16*IMG-4}\ns_lshl_b32 s43, s37, 10\ns_add_u32 s43, s43, {FLAG0}")
        a(f"v_mov_b32 v4, {VOOB}\nv_writelane_b32 v4, s41, 0\nv_writelane_b32 v4, s42, 1\nv_writelane_b32 v4, s43, 2")
        a(f"s_mul_i32 s41, s36, {256*7168}\ns_mul_i32 s42, s37, 224\ns_add_u32 s41, s41, s42\ns_add_u32 s42, s41, {255*7168}")
        a(f"v_mov_b32 v5, {VOOB}\nv_writelane_b32 v5, s41, 0\nv_writelane_b32 v5, s42, 1")
        a(f"s_mul_i32 s41, s36, {QCH}\ns_add_u32 s41, s41, {8*QCH}\ns_add_u32 s42, s41, {QCH-4}")
        a(f"v_mov_b32 v6, {VOOB}\nv_writelane_b32 v6, s41, 0\nv_writelane_b32 v6, s42, 1")
        a(f"s_lshl_b32 s41, s36, 19\nv_mov_b32 v7, {VOOB}\nv_writelane_b32 v7, s41, 0\nv_mov_b32 v8, {VOOB}\nv_writelane_b32 v8, 0, 0")
        a("s_waitcnt lgkmcnt(0)")
        a.srd(24, 6, K*N*4); a.srd(28, 18, WSZ); a.srd(20, 4, M*K*2); a.srd(32, 14, M*N*2); a.srd(92, 16, 256)
        if opt.pt & 1: a("buffer_load_dword v250, v6, s[24:27], 0 offen nt")
        if opt.pt & 2: a("buffer_load_dword v251, v4, s[28:31], 0 offen sc1")
        if opt.pt & 4: a("buffer_load_dword v252, v7, s[20:23], 0 offen")
        if opt.pt & 8: a("buffer_load_dword v253, v8, s[92:95], 0 offen sc1")
        if opt.pt & 16: a("buffer_load_dword v249, v5, s[32:35], 0 offen nt")
        a("L_nopt:")
    a("s_cmp_lt_u32 s38, 4\ns_cbranch_scc1 L_consumer")

    S = (8, 40); P = (72, 148); AV = (88, 124); Z = 96; XO = 132; QO = 140; LW = 102; IW = 164; WO = 168
    NV = 170; FP = 172; FV = 174; TO = 176; FS = 177; NO = 178; IT = 179; TE = 180
    vm = VM()
    state = dict(m0=None, tag=False, touched=False)
    a("s_sub_u32 s38, s38, 4")
    if opt.pprio: a(f"s_setprio {opt.pprio}")
    cm("qw offsets: lane = (h, nq): rows 16p+8h+r, columns 112*ni+4*nq..+3 (nq < 28)")
    a("v_and_b32 v3, 31, v2\nv_lshrrev_b32 v4, 5, v2")
    a(f"v_mul_u32_u24 v5, {8*N*4}, v4\nv_lshl_add_u32 v5, v3, 4, v5")
    a(f"s_mul_i32 s41, s38, {16*N*4}\ns_mul_i32 s42, s37, 448\ns_add_u32 s41, s41, s42\nv_add_u32 v5, s41, v5")
    a(f"v_cmp_gt_u32 vcc, 28, v3\nv_mov_b32 v6, {VOOB}\ns_mul_i32 s47, s36, {QCH}\nv_cndmask_b32 v{QO}, v6, v5, vcc\ns_mov_b64 s[52:53], vcc")
    for r in range(1, 8): a(f"v_add_u32 v{QO+r}, {r*N*4}, v{QO}")
    a(f"s_add_u32 s63, s47, {8*QCH}")
    a(f"s_mov_b32 s26, {K*N*4}\ns_mov_b32 s27, 0x20000")
    def setup_small():
        cm("zeros: 4 columns per lane; act: table entry l>>2 holds the 16 k of this wave in K-chunk l>>2")
        if state.get('karg'): a.srd(84, 12, K*2); a.srd(88, 10, N*2)
        a("s_mul_i32 s42, s37, 224\nv_lshl_add_u32 v7, v3, 3, s42")
        a("v_lshrrev_b32 v5, 2, v2")
        a("v_and_b32 v6, 3, v2\nv_lshlrev_b32 v6, 3, v6\nv_lshl_add_u32 v5, v5, 7, v6\ns_lshl_b32 s46, s38, 5\nv_add_u32 v108, s46, v5")
    def vchunk(dst, t, tmp):
        a(f"v_cmp_gt_u32 vcc, 9, v{t}\nv_add_u32 v{dst}, s36, v{t}\nv_subrev_u32 v{tmp}, 1, v{dst}\nv_cndmask_b32 v{dst}, v{dst}, v{tmp}, vcc\nv_and_b32 v{dst}, 7, v{dst}")
        a(f"v_cmp_le_u32 vcc, 9, v{t}\nv_mov_b32 v{tmp}, 8\nv_or_b32 v{tmp}, v{tmp}, v{dst}\nv_cndmask_b32 v{dst}, v{dst}, v{tmp}, vcc")
        a(f"v_cmp_eq_u32 vcc, 0, v{t}\nv_mov_b32 v{tmp}, s36\ns_nop 0\nv_cndmask_b32 v{dst}, v{dst}, v{tmp}, vcc")
        a(f"v_cmp_eq_u32 vcc, 1, v{t}\nv_add_u32 v{tmp}, 8, v{tmp}\ns_nop 0\nv_cndmask_b32 v{dst}, v{dst}, v{tmp}, vcc")
    def setup_x():
        cm("x LDS-DMA offsets: 8 rows x 128 B per instruction, 16-byte slots XOR-swizzled by row")
        a("v_lshrrev_b32 v5, 3, v2\nv_and_b32 v6, 7, v2\nv_xor_b32 v6, v6, v5\nv_lshlrev_b32 v6, 4, v6\nv_lshl_add_u32 v100, v5, 11, v6")
        a(f"s_lshl_b32 s45, s36, 19\ns_lshl_b32 s46, s38, 17\ns_add_u32 s45, s45, s46\nv_add_u32 v{XO}, s45, v100")
        for r in range(1, 8): a(f"v_add_u32 v{XO+r}, {r*16384 - (r&3)*1024}, v{XO}")
        a("s_lshl_b32 s44, s38, 13\ns_lshl_b32 s41, s36, 7\ns_add_u32 s43, s41, 1024\ns_add_u32 s45, s36, 1\ns_and_b32 s45, s45, 7\ns_lshl_b32 s82, s45, 7")
        a(f"s_mov_b32 s22, {M*K*2}\ns_mov_b32 s23, 0x20000")
        state['setx'] = True
    def setup_rest():
        if not state.get('setx'): setup_x()
        a.srd(28, 18, WSZ); a.srd(92, 16, 256)
        a(f"s_lshl_b32 s51, s37, 4\ns_mul_i32 s46, s38, 3584\ns_add_u32 s50, s46, {BBASE}\nv_lshl_add_u32 v{WO}, v2, 4, s46")
        if opt.itouch or 'it0' in opt.su or 'it1' in opt.su:
            a(f"v_lshl_add_u32 v5, v2, 7, s46\nv_cmp_gt_u32 vcc, 28, v2\nv_mov_b32 v6, {VOOB}\ns_nop 0\nv_cndmask_b32 v{IT}, v6, v5, vcc")
        a(f"s_add_u32 s45, s36, s51\ns_mul_i32 s48, s45, {IMG}\ns_add_u32 s83, s48, {8*IMG}")
        cm("image offsets of the lane's four columns: kgroup*1792 + row*16")
        a("s_lshl_b32 s45, s38, 1\nv_add_u32 v4, s45, v4\nv_mul_u32_u24 v4, 1792, v4")
        colgroups("s54", "s55", "s56", "s45")
        a("s_lshr_b32 s54, s54, 3\ns_lshr_b32 s55, s55, 3\ns_lshr_b32 s56, s56, 3")
        a("v_subrev_u32 v118, s54, v3\nv_subrev_u32 v5, s55, v3\nv_subrev_u32 v6, s56, v3")
        a("v_cmp_gt_u32 s[54:55], 16, v118\nv_cmp_gt_u32 s[56:57], 8, v5\nv_add_u32 v5, 64, v5\nv_add_u32 v6, 96, v6")
        for c in range(4):
            a(f"v_add_u32 v114, {4*c}, v6\nv_add_u32 v115, {(0,16,8,24)[c]}, v5\nv_add_u32 v116, {16*c}, v118")
            a(f"v_cndmask_b32 v114, v114, v115, s[56:57]\nv_cndmask_b32 v114, v114, v116, s[54:55]")
            a(f"v_lshl_add_u32 v{IW+c}, v114, 4, v4\nv_add_u32 v{LW+c}, {BBASE}, v{IW+c}")
        cm("hand-off words: one 256-byte block per (column tile, wave); tag word address; XCD id")
        a(f"s_lshl_b32 s45, s37, 2\ns_add_u32 s45, s45, s38\ns_lshl_b32 s45, s45, 8\ns_add_u32 s45, s45, {FLAG0}")
        a(f"v_and_b32 v5, 7, v2\nv_lshl_add_u32 v{FP}, v5, 3, s45\ns_lshl_b32 s46, s36, 3\ns_add_u32 s45, s45, s46\nv_mov_b32 v{FS}, s45")
        a(f"s_lshl_b32 s45, s37, 3\nv_mov_b32 v{NO}, s45")
        a("s_getreg_b32 s59, hwreg(HW_REG_XCC_ID, 0, 4)\ns_lshl_b32 s59, s59, 28\ns_mov_b32 s57, 0\ns_mov_b32 s39, 0")
        if opt.touch:
            cm("x lines of later chunks are pulled on chip early, 8 rows per column tile: rows 8*ni+2p+(l&1), position l>>1")
            a("v_lshrrev_b32 v5, 1, v2\nv_and_b32 v117, 15, v5"); vchunk(6, 117, 116)
            a("v_lshlrev_b32 v6, 7, v6\nv_and_b32 v114, 1, v2\nv_lshl_add_u32 v6, v114, 11, v6")
            a("s_lshl_b32 s45, s36, 8\ns_lshl_b32 s46, s37, 3\ns_add_u32 s45, s45, s46\ns_lshl_b32 s46, s38, 1\ns_add_u32 s45, s45, s46\ns_lshl_b32 s45, s45, 11\nv_add_u32 v6, s45, v6")
            a(f"v_cmp_gt_u32 vcc, {opt.touch}, v5\nv_mov_b32 v114, {VOOB}\ns_nop 0\nv_cndmask_b32 v{TE}, v114, v6, vcc")
            a(f"v_subrev_u32 v5, {opt.touch}, v5\nv_cmp_gt_u32 vcc, {16-opt.touch}, v5\ns_nop 1\nv_cndmask_b32 v{TO}, v114, v6, vcc")
        if 'xt' in opt.su.split(','):
            cm("the four workgroups of an XCD that share this x tile each pull a quarter of its first chunks into L2")
            a("v_lshrrev_b32 v117, 4, v2"); vchunk(6, 117, 116)
            a(f"v_lshlrev_b32 v6, 7, v6\nv_and_b32 v114, 15, v2\nv_lshl_add_u32 v6, v114, 11, v6")
            a("s_lshl_b32 s45, s36, 8\ns_and_b32 s46, s37, 3\ns_lshl_b32 s46, s46, 6\ns_add_u32 s45, s45, s46\ns_lshl_b32 s46, s38, 4\ns_add_u32 s45, s45, s46\ns_lshl_b32 s45, s45, 11\nv_add_u32 v181, s45, v6")
            if opt.xtlo:
                a(f"v_cmp_le_u32 vcc, {opt.xtlo}, v117\nv_mov_b32 v114, {VOOB}\ns_nop 0\nv_cndmask_b32 v181, v114, v181, vcc")
            if opt.telo:
                a(f"v_lshrrev_b32 v5, 1, v2\nv_cmp_le_u32 vcc, {opt.telo}, v5\nv_mov_b32 v114, {VOOB}\ns_nop 0\nv_cndmask_b32 v{TE}, v114, v{TE}, vcc")
        a(f"s_lshl_b32 s45, s38, 10\ns_add_u32 s45, s45, {TBASE}")
        a("v_lshl_add_u32 v107, v2, 4, s45\nv_lshrrev_b32 v5, 5, v2\nv_lshl_add_u32 v106, v5, 5, s45\ns_lshl_b32 s45, s36, 6\nv_add_u32 v109, s45, v106")
        if opt.mix: a("s_mov_b32 s58, 0x4b800000")

    def chunk_static(seq, dst):
        if seq == 0: a(f"s_mov_b32 {dst}, s36")
        elif seq == 1: a(f"s_add_u32 {dst}, s36, 8")
        elif seq <= 8: a(f"s_add_u32 {dst}, s36, {seq-1}\ns_and_b32 {dst}, {dst}, 7")
        else: a(f"s_add_u32 {dst}, s36, {seq}\ns_and_b32 {dst}, {dst}, 7\ns_or_b32 {dst}, {dst}, 8")
    def chunk_dyn(seq, dst, tmp):
        a(f"s_add_u32 {dst}, {seq}, s36\ns_cmp_ge_u32 {seq}, 9\ns_cselect_b32 {tmp}, 0, 1\ns_sub_u32 {dst}, {dst}, {tmp}\ns_and_b32 {dst}, {dst}, 7\ns_xor_b32 {tmp}, {tmp}, 1\ns_lshl_b32 {tmp}, {tmp}, 3\ns_or_b32 {dst}, {dst}, {tmp}")
    SETS = (dict(x='s41', w='s42', a0='s60', a1='s61', b='s62'), dict(x='s47', w='s63', a0='s54', a1='s55', b='s56'))
    def capture(fn):
        keep = a.lines; a.lines = []
        fn()
        l = a.lines; a.lines = keep
        return l
    def scal_list(seq, st):
        def f():
            if seq < 16:
                sl = seq % 3
                chunk_static(seq, "s45")
                a(f"s_lshl_b32 {st['x']}, s45, 7\ns_add_u32 s45, s45, s51\ns_mul_i32 {st['w']}, s45, {IMG}")
                a(f"s_add_u32 {st['a0']}, s44, {sl*32768}\ns_add_u32 {st['a1']}, s44, {sl*32768+4096}\ns_add_u32 {st['b']}, s50, {sl*IMG}")
        return capture(f)
    def wlist(tag, st):
        it = []
        for i in range(4):
            pre = f"s_mov_b32 m0, {st['b']}\ns_nop 0\n" if i == 0 else ("s_mov_b32 exec_hi, 0\n" if i == 3 else "")
            post = "\ns_mov_b32 exec_hi, -1" if i == 3 else ""
            it.append((tag, pre + f"buffer_load_dwordx4 v{WO}, s[28:31], {st['w']} offen offset:{i*1024} {opt.wflag} lds" + post))
        return it
    def alist(tag, st):
        it = []
        for r in range(8):
            pre = f"s_mov_b32 m0, {st['a0'] if r == 0 else st['a1']}\ns_nop 0\n" if r % 4 == 0 else ""
            it.append((tag, pre + f"buffer_load_dwordx4 v{XO+r}, s[20:23], {st['x']} offen offset:{(r&3)*1024} {opt.aflag} lds"))
        return it
    def emit(items, fill=()):
        if items: state['m0'] = None
        k = 0; n = len(items)
        for i, (tag, txt) in enumerate(items):
            a(txt); vm.add(tag)
            upto = min(len(fill), len(fill) * (i + 1) // max(n - 2, 1))
            while k < upto: a(fill[k]); k += 1
        while k < len(fill): a(fill[k]); k += 1
    def bload(setidx, r, so, tag=None):
        a(f"buffer_load_dwordx4 v[{S[setidx]+4*r}:{S[setidx]+4*r+3}], v{QO+r}, s[24:27], {so} offen {opt.qflag}")
        if tag: vm.add(tag)
    def vwait(tags, lgkm=False):
        n = vm.wait(tags)
        if n is not None: a(f"s_waitcnt vmcnt({n})" + (" lgkmcnt(0)" if lgkm else ""))
        elif lgkm: a("s_waitcnt lgkmcnt(0)")
    def conv(u, av, p, rows, wait=True):
        cs = S[u]
        for r in rows:
            if wait: vwait([f"r{u}_{r}"])
            if opt.mix:
                for c in range(4): a(f"v_fma_mix_f32 v{cs+4*r+c}, v{cs+4*r+c}, s58, -v{Z+c} op_sel_hi:[1,0,0]")
            elif opt.pk:
                for c in range(4): a(f"v_cvt_f32_i32 v{cs+4*r+c}, v{cs+4*r+c}")
                for c in (0, 2): a(f"v_pk_add_f32 v[{cs+4*r+c}:{cs+4*r+c+1}], v[{cs+4*r+c}:{cs+4*r+c+1}], v[{Z+c}:{Z+c+1}] neg_lo:[0,1] neg_hi:[0,1]")
                sel = "op_sel:[0,1] op_sel_hi:[1,1]" if r & 1 else "op_sel:[0,0] op_sel_hi:[1,0]"
                for c in (0, 2): a(f"v_pk_mul_f32 v[{cs+4*r+c}:{cs+4*r+c+1}], v[{cs+4*r+c}:{cs+4*r+c+1}], v[{av+(r&~1)}:{av+(r&~1)+1}] {sel}")
            else:
                for c in range(4): a(f"v_cvt_f32_i32 v{cs+4*r+c}, v{cs+4*r+c}")
                for c in range(4): a(f"v_sub_f32 v{cs+4*r+c}, v{cs+4*r+c}, v{Z+c}")
            if opt.mix or not opt.pk:
                for c in range(4): a(f"v_mul_f32 v{cs+4*r+c}, v{cs+4*r+c}, v{av+r}")
            if r & 1:
                for c in range(4): a(f"v_cvt_pk_bf16_f32 v{p+4*c+(r>>1)}, v{cs+4*(r-1)+c}, v{cs+4*r+c}")
    XS = ('s41', 's43', 's82')
    def aitem(c, r):
        want = c*32768 + (r >> 2)*4096
        if state['m0'] != want: a(f"s_add_u32 m0, s44, {want}\ns_nop 0"); state['m0'] = want
        a(f"buffer_load_dwordx4 v{XO+r}, s[20:23], {XS[c]} offen offset:{(r&3)*1024} {opt.aflag} lds"); vm.add(f'c{c}')
    def get_tag():
        if state['tag']: return
        state['tag'] = True
        vwait(['nonce'])
        a("s_mov_b32 s40, 0")
        a("L_nonce:")
        a(f"v_readfirstlane_b32 s45, v{NV}\ns_nop 3\ns_cmp_lg_u32 s45, 0")
        a("s_cbranch_scc1 L_gotn ;poll1")
        a(f"s_add_u32 s40, s40, 1\ns_cmp_ge_u32 s40, {opt.tmo}\ns_cbranch_scc1 L_non")
        a(f"buffer_load_dwordx2 v[{NV}:{NV+1}], v{NO}, s[92:95], 0 offen sc1\ns_waitcnt vmcnt(0)\ns_branch L_nonce")
        a(f"L_non:\ns_mov_b32 s57, 1\nv_mov_b32 v{FS}, {VOOB}")
        a("L_gotn:")
        if opt.stamps and opt.st2 == 4: a("s_mov_b32 s16, s40")
        a(f"v_xor_b32 v{NV+1}, s59, v{NV+1}")
    def signal(tags, off):
        get_tag()
        vwait(tags)
        if not opt.noflag:
            a(f"s_mov_b64 exec, 1\nbuffer_store_dwordx2 v[{NV}:{NV+1}], v{FS}, s[28:31], 0 offen offset:{off} {opt.fflag}\ns_mov_b64 exec, -1"); vm.add('flag')
    def pollload(off, tag=None):
        a(f"buffer_load_dwordx2 v[{FV}:{FV+1}], v{FP}, s[28:31], 0 offen offset:{off} {opt.pollflag}")
        if tag: vm.add(tag)
    def touch(reg, so="0"):
        a(f"buffer_load_dword v120, v{reg}, s[20:23], {so} offen"); vm.add('touch')
    def poll(lab, off, fb, tag, retry_touch=False):
        a("s_mov_b32 s40, 0")
        a(f"{lab}:")
        a(f"v_xor_b32 v{FV}, v{FV}, v{NV}\nv_xor_b32 v{FV+1}, v{FV+1}, v{NV+1}\nv_or_b32 v{FV}, v{FV}, v{FV+1}\nv_cmp_ne_u32 vcc, 0, v{FV}")
        a(f"s_add_u32 s40, s40, 1\ns_nop 1\ns_cmp_ge_u32 s40, {opt.tmo}")
        a(f"s_cbranch_vccz {lab}_ok ;{tag}")
        a(f"s_cbranch_scc1 {fb}")
        if retry_touch:
            a(f"buffer_load_dword v120, v{TO}, s[20:23], s39 offen\ns_mov_b32 s39, {OOB}")
        pollload(off)
        a(f"s_waitcnt vmcnt(0)\ns_branch {lab}")
        a(f"{lab}_ok:")
    def spoll_issue(off):
        a(f"s_load_dwordx16 s[84:99], s[42:43], {off} glc")
    def spoll_setup():
        get_tag()
        a(f"v_readfirstlane_b32 s100, v{NV}\nv_readfirstlane_b32 s101, v{NV+1}")
        a(f"s_lshl_b32 s45, s37, 2\ns_add_u32 s45, s45, s38\ns_lshl_b32 s45, s45, 8\ns_add_u32 s45, s45, {FLAG0}\ns_add_u32 s42, s18, s45\ns_addc_u32 s43, s19, 0")
    def spoll(lab, off, fb, tag, retry_touch=False):
        a("s_mov_b32 s40, 0")
        a(f"{lab}:")
        a("s_waitcnt lgkmcnt(0)")
        for i in range(8): a(f"s_xor_b64 s[{84+2*i}:{85+2*i}], s[{84+2*i}:{85+2*i}], s[100:101]")
        for i in range(1, 8): a(f"s_or_b64 s[84:85], s[84:85], s[{84+2*i}:{85+2*i}]")
        a("s_cmp_eq_u64 s[84:85], 0")
        a(f"s_cbranch_scc1 {lab}_ok ;{tag}")
        a(f"s_add_u32 s40, s40, 1\ns_cmp_ge_u32 s40, {opt.tmo}\ns_cbranch_scc1 {fb}")
        spoll_issue(off)
        a(f"s_branch {lab}")
        a(f"{lab}_ok:")
    def slices(tok):
        lo, hi = 0, 8
        if '[' in tok: tok, rg = tok[:-1].split('['); lo, hi = [int(x) for x in rg.split(':')]
        return tok, range(lo, hi)
    fb = {}
    def do(tok):
        if '+' in tok:
            parts = [slices(x) for x in tok.split('+')]
            n = max(len(r) for _, r in parts)
            for i in range(n):
                for (t, rows) in parts:
                    for q in range(len(rows)*i//n, len(rows)*(i+1)//n): do(f"{t}[{rows[q]}:{rows[q]+1}]")
            return
        t, rows = slices(tok)
        if t in ('r0', 'r1'):
            for r in rows: bload(int(t[1]), r, ('s47', 's63')[int(t[1])], f"{t}_{r}")
        elif t in ('a0', 'a1', 'a2'):
            for r in rows: aitem(int(t[1]), r)
            fb[t] = fb.get(t, 0) + len(rows)
        elif t == 'karg':
            state['karg'] = True
            a("s_waitcnt lgkmcnt(0)"); stamp(1)
            a("s_mov_b32 s24, s6\ns_mov_b32 s25, s7\ns_mov_b32 s20, s4\ns_mov_b32 s21, s5")
        elif t == 'small':
            if state.get('sets'): a.srd(84, 12, K*2); a.srd(88, 10, N*2)
            else: setup_small()
            a("buffer_load_dwordx2 v[110:111], v108, s[84:87], 0 offen"); vm.add('small')
            a("buffer_load_dwordx2 v[112:113], v7, s[88:91], 0 offen"); vm.add('small')
        elif t == 'setup': stamp_init(); setup_rest()
        elif t == 'setx': setup_x()
        elif t == 'sets': setup_small(); state['sets'] = True
        elif t == 'nonce': a(f"buffer_load_dwordx2 v[{NV}:{NV+1}], v{NO}, s[92:95], 0 offen sc1"); vm.add('nonce')
        elif t == 'ft':
            a(f"buffer_load_dword v121, v{FP}, s[28:31], 0 offen sc1"); vm.add('ft')
            if opt.flags == 2: a(f"buffer_load_dword v121, v{FP}, s[28:31], 0 offen offset:128 sc1"); vm.add('ft')
        elif t == 'et': touch(TE)
        elif t == 'xt': touch(181)
        elif t == 'lt': touch(TO); state['touched'] = True
        elif t in ('it0', 'it1'): a(f"buffer_load_dword v121, v{IT}, s[28:31], {('s48','s83')[int(t[2])]} offen {opt.itflag}"); vm.add('it')
        elif t == 'atab':
            vwait(['small'])
            a("v_lshlrev_b32 v114, 16, v110\nv_and_b32 v115, 0xffff0000, v110\nv_lshlrev_b32 v116, 16, v111\nv_and_b32 v117, 0xffff0000, v111")
            a("ds_write_b128 v107, v[114:117]")
            a(f"v_lshlrev_b32 v{Z}, 16, v112\nv_and_b32 v{Z+1}, 0xffff0000, v112\nv_lshlrev_b32 v{Z+2}, 16, v113\nv_and_b32 v{Z+3}, 0xffff0000, v113")
            a(f"ds_read_b128 v[{AV[0]}:{AV[0]+3}], v109\nds_read_b128 v[{AV[0]+4}:{AV[0]+7}], v109 offset:16")
            a(f"ds_read_b128 v[{AV[1]}:{AV[1]+3}], v109 offset:512\nds_read_b128 v[{AV[1]+4}:{AV[1]+7}], v109 offset:528")
            a("s_waitcnt lgkmcnt(0)"); stamp(6, mode=0)
        elif t in ('cv0', 'cv1'):
            u = int(t[2]); a(";HOT"); conv(u, AV[u], P[u], rows); a(";COLD")
            if rows[-1] == 7: stamp(7 + u, mode=0)
        elif t in ('ls0', 'ls1'):
            u = int(t[2]); state['ldsw'] = True
            a("s_mov_b64 exec, s[52:53]")
            for c in range(4): a(f"ds_write_b128 v{LW+c}, v[{P[u]+4*c}:{P[u]+4*c+3}] offset:{IMG*u}")
            a("s_mov_b64 exec, -1")
        elif t in ('gs0', 'gs1'):
            u = int(t[2])
            a("s_mov_b64 exec, s[52:53]")
            for c in range(4): a(f"buffer_store_dwordx4 v[{P[u]+4*c}:{P[u]+4*c+3}], v{IW+c}, s[28:31], {('s48','s83')[u]} offen {(opt.pflag, opt.p1flag)[u]}")
            vm.add(f'st{u}', 4)
            a("s_mov_b64 exec, -1")
        elif t in ('bar0', 'bar1'):
            vwait([f'c{t[3]}'], lgkm=state.get('ldsw', False)); state['ldsw'] = False
            if t == 'bar1': stamp(12, mode=0)
            a("s_barrier")
            if t == 'bar0': stamp(9, mode=0)
            else: stamp(6, mode=1)
        elif t == 'sig0': signal(['st0'], 0); stamp(10, mode=0)
        elif t == 'sig1': signal(['st1'], 128 if opt.flags == 2 else 0); stamp(11, mode=0)
        elif t == 'pl': get_tag(); pollload(0, 'pl')
        elif t == 'spl':
            assert fb.get('a1') == 8 and opt.flags == 1
            spoll_setup(); spoll_issue(0); state['spl'] = True
        elif t == 'chk':
            assert state.get('spl') and fb.get('a0') == 8
            for l in scal_list(2, SETS[0]): a(l) if not l.startswith('s_mul_i32 s42') else a(l.replace('s42', 's46'))
            a("s_cmp_lg_u32 s57, 0\ns_cbranch_scc1 L_chkf")
            spoll("L_pA", 0, "L_chkf", "poll2")
            stamp(4)
            a("s_mov_b32 s42, s46\ns_branch L_chkd")
            a(f"L_chkf:\ns_waitcnt lgkmcnt(0)\ns_mov_b32 s57, 1\ns_mov_b32 s42, {OOB}")
            if opt.stamps: stamp(4)
            a("L_chkd:")
            emit(wlist('c2', SETS[0])); state['chk'] = True
        elif t == 'wl': a('s_waitcnt lgkmcnt(0)'); state['ldsw'] = False
        elif t == 'barx': a('s_barrier')
        elif t[0] == 'T': stamp(int(t[1:]), mode=3)
        elif t[0] == 'W': vwait([t[1:]])
        else: raise ValueError(tok)
    prog = opt.su.split(',')
    for c in opt.cx: fb[f'a{c}'] = 8
    names = [slices(t)[0] for t in prog if '+' not in t]
    assert 'bar1' == names[-1] or 'bar1' in names
    for t in prog: do(t)
    late = [t for t in opt.su2.split(',') if t]
    if 'pl' not in names and 'spl' not in names: get_tag(); pollload(0, 'pl')
    if opt.a3early:
        assert fb.get('a2', 0) == 8 and not state.get('chk')
        for l in scal_list(3, SETS[1]): a(l)
        emit(alist('c3', SETS[1]))
    a("s_cmp_lg_u32 s57, 0\ns_cbranch_scc1 L_fb2")
    dyn = opt.touch and opt.twhen == 0
    a2_before = fb.get('a2', 0)
    assert a2_before in (0, 8)
    if state.get('chk'):
        for l in scal_list(3, SETS[1]): a(l)
    else:
        if 'spl' in names:
            assert not dyn
            spoll("L_pA", 0, "L_fb2", "poll2")
        else:
            vwait(['pl'])
            poll("L_pA", 0, "L_fb2", "poll2", retry_touch=dyn)
        stamp(4)
        for l in scal_list(2, SETS[0]): a(l)
        emit(wlist('c2', SETS[0]), scal_list(3, SETS[1]) if not opt.a3early else [])
    for t in late: do(t)
    assert fb.get('a2', 0) == 8
    if dyn: touch(TO, "s39")
    carry = []
    for s in range(2, 16):
        cur = SETS[(s + 1) % 2]; nxt = SETS[s % 2]
        if s == 8 and opt.flags == 2:
            vwait(['plB'])
            poll("L_pB", 128, "L_fb8", "poll3")
        emit(carry); carry = []
        if s < 15:
            ll = (alist(f'c{s+1}', cur) + wlist(f'c{s+1}', cur)) if opt.afirst else (wlist(f'c{s+1}', cur) + alist(f'c{s+1}', cur))
            if s == 2 and opt.a3early: ll = wlist('c3', cur)
            npre = {2: opt.pre2, 3: opt.pre3, 4: opt.pre4}.get(s, opt.preall)
            if npre < 12:
                assert npre in (0, 4, 8)
                carry = ll[npre:]; ll = ll[:npre]
                emit(ll)
                carry[-1] = (carry[-1][0], carry[-1][1] + "\n" + "\n".join(scal_list(s+2, nxt)))
            else:
                emit(ll, scal_list(s+2, nxt))
        if opt.touch and opt.tstag and opt.twhen <= s < opt.twhen + opt.tstag:
            a(f"s_and_b32 s46, s37, {opt.tstag-1}\ns_cmp_eq_u32 s46, {s - opt.twhen}\ns_cselect_b32 s46, 0, {OOB}")
            touch(TO, "s46")
        elif opt.touch and opt.twhen == s and not opt.tstag: touch(TO)
        if opt.sot and opt.sot <= s < opt.sot + 5:
            if s == opt.sot: a("s_mul_i32 s46, s38, 3584\ns_add_u32 s46, s46, s83\ns_add_u32 s48, s18, s46\ns_addc_u32 s49, s19, 0") if not opt.stamps else a("s_mul_i32 s46, s38, 3584\ns_add_u32 s46, s46, s83\ns_add_u32 s100, s18, s46\ns_addc_u32 s101, s19, 0")
            bp = "s[48:49]" if not opt.stamps else "s[100:101]"
            a("s_waitcnt lgkmcnt(0)")
            for i in range(12*(s - opt.sot), min(56, 12*(s - opt.sot + 1))): a(f"s_load_dword s{(84,85,86,87,88,89,90,91,92,93,94,95)[i % 12]}, {bp}, {64*i}")
        if opt.itouch and s == opt.itouch: do('it1')
        if opt.flags == 2 and s == opt.f1when and 'sig1' not in names: signal(['st1'], 128)
        if opt.flags == 2 and s == 7: pollload(128, 'plB')
        vwait([f'c{s}'])
        if s == 7: stamp(13, mode=0)
        if opt.nobar and (s >= 4): a("s_sleep 0" if opt.nobar == 1 else "s_sleep 8")
        else: a("s_barrier")
        if s <= 8: stamp(5 + s, mode=1)
        if s >= 8:
            stamp(s - 2, mode=2)
            if opt.stamps and opt.st2 == 2 and s in (8, 15): a(f"s_memtime s[{78 if s == 8 else 80}:{79 if s == 8 else 81}]")
    if opt.wb:
        a("s_and_b32 s45, s37, 3\ns_or_b32 s45, s45, s36\ns_or_b32 s45, s45, s38")
        if opt.wb == 2: a("s_mov_b32 s45, s38")
        a("s_cmp_lg_u32 s45, 0\ns_cbranch_scc1 L_fin\nbuffer_wbl2 sc1")
    a("L_fin:")
    if not opt.tail: a("s_barrier")
    if opt.stamps:
        stamp(5); stamp(2); stamp(3)
        a("L_stamps:")
        a("s_waitcnt vmcnt(0) lgkmcnt(0)")
        a("s_getreg_b32 s45, hwreg(HW_REG_XCC_ID)")
        for i in range(14): a(f"v_mov_b32 v{8+i}, s{SL[i]}")
        a(f"s_sub_u32 s80, s80, s78\ns_cmp_ge_u32 s49, {4 if opt.st2 < 2 else 99}\ns_cselect_b32 s80, s40, s80\nv_mov_b32 v22, s45\nv_mov_b32 v23, s80")
        a.srd(20, 18, 1 << 20, off=(128 << 20))
        a("s_mul_i32 s41, s2, 512\nv_mov_b32 v3, s41")
        a("s_lshl_b32 s42, s49, 6\nv_add_u32 v3, s42, v3")
        for i in range(4): a(f"buffer_store_dwordx4 v[{8+4*i}:{11+4*i}], v3, s[20:23], 0 offen offset:{16*i}")
    a("s_endpgm")

    a("L_consumer:")
    a("s_memrealtime s[82:83]")
    a("v_and_b32 v3, 15, v2\nv_lshrrev_b32 v4, 4, v2")
    cm("fragment addresses: x rows 128 B with XOR swizzle, weights k-group major")
    a("v_and_b32 v5, 7, v3\nv_xor_b32 v5, v5, v4\nv_lshlrev_b32 v5, 4, v5\nv_lshl_add_u32 v5, v3, 7, v5")
    a("s_lshl_b32 s41, s38, 13\nv_add_u32 v200, s41, v5\nv_xor_b32 v201, 64, v200")
    a("v_add_u32 v202, 0x10000, v200\nv_add_u32 v203, 0x10000, v201")
    a(f"v_mul_u32_u24 v5, 1792, v4\nv_add_u32 v5, {BBASE}, v5")
    a("v_lshl_add_u32 v204, v3, 4, v5")
    a("v_and_b32 v6, 1, v3\nv_lshrrev_b32 v7, 1, v3\nv_lshl_add_u32 v6, v6, 3, v7\nv_lshl_add_u32 v205, v6, 4, v5")
    a("v_and_b32 v6, 3, v3\nv_lshrrev_b32 v7, 2, v3\nv_lshl_add_u32 v6, v6, 2, v7\nv_lshl_add_u32 v206, v6, 4, v5")
    SC = 208; RS = 240
    a("s_lshl_b32 s41, s36, 8\ns_lshl_b32 s42, s38, 6\ns_add_u32 s41, s41, s42\ns_mul_i32 s41, s41, 7168\ns_mul_i32 s42, s37, 224\ns_add_u32 s41, s41, s42")
    colgroups("s54", "s55", "s56", "s45")
    if opt.epi == 'dir':
        a("v_mul_u32_u24 v5, 28672, v4\nv_add_u32 v5, s41, v5")
        a("v_lshl_add_u32 v216, v3, 3, v5\nv_lshl_add_u32 v217, v3, 2, v5\nv_lshl_add_u32 v218, v3, 1, v5")
    else:
        a(f"s_mul_i32 s43, s38, {64*RS}\nv_mul_u32_u24 v5, {4*RS}, v4\nv_add_u32 v5, s43, v5")
        a("v_lshl_add_u32 v216, v3, 3, v5\nv_lshl_add_u32 v217, v3, 2, v5\nv_lshl_add_u32 v218, v3, 1, v5")
        a(f"v_mul_u32_u24 v5, {RS}, v4\nv_lshl_add_u32 v5, v3, 4, v5\nv_add_u32 v219, s43, v5")
        a(f"v_mul_u32_u24 v5, 7168, v4\nv_lshl_add_u32 v5, v3, 4, v5\nv_add_u32 v5, s41, v5")
        a(f"v_cmp_gt_u32 vcc, 14, v3\nv_mov_b32 v6, {VOOB}\ns_nop 0\nv_cndmask_b32 v224, v6, v5, vcc")
    a("v_add_u32 v216, s54, v216\nv_add_u32 v217, s55, v217\nv_add_u32 v218, s56, v218")
    a("s_add_u32 s54, s54, s42\ns_add_u32 s55, s55, s42\ns_add_u32 s56, s56, s42")
    a("v_lshl_add_u32 v6, v3, 3, s54\nv_lshl_add_u32 v7, v3, 2, s55\nv_lshl_add_u32 v8, v3, 1, s56")
    a("s_lshl_b32 s43, s37, 3\nv_mov_b32 v9, s43")
    a("s_or_b32 s44, s36, s38")
    a("s_waitcnt lgkmcnt(0)")
    stamp(1)
    cm("the first member of each group publishes a launch-unique tag in d_debug (zero on entry)")
    a("s_cmp_lg_u32 s44, 0\ns_cbranch_scc1 L_nonon")
    a.srd(92, 16, 256)
    a("s_or_b32 s82, s82, 1\nv_mov_b32 v10, s82\nv_mov_b32 v11, s83")
    if not opt.nononce:
        a("s_mov_b64 exec, 1\nbuffer_store_dwordx2 v[10:11], v9, s[92:95], 0 offen sc1\ns_mov_b64 exec, -1")
    a("L_nonon:")
    stamp_init()
    a.srd(84, 8, N*2); a.srd(32, 14, M*N*2)
    def scale_loads(r0, r1, r2):
        a(f"buffer_load_dwordx2 v[220:221], v{r0}, s[84:87], 0 offen")
        a(f"buffer_load_dword v222, v{r1}, s[84:87], 0 offen")
        a(f"buffer_load_ushort v223, v{r2}, s[84:87], 0 offen")
    def scale_unpack():
        a(f"v_lshlrev_b32 v{SC}, 16, v220\nv_and_b32 v{SC+1}, 0xffff0000, v220\nv_lshlrev_b32 v{SC+2}, 16, v221\nv_and_b32 v{SC+3}, 0xffff0000, v221")
        a(f"v_lshlrev_b32 v{SC+4}, 16, v222\nv_and_b32 v{SC+5}, 0xffff0000, v222\nv_lshlrev_b32 v{SC+6}, 16, v223")
    if opt.sclate: a("v_mov_b32 v236, v6\nv_mov_b32 v237, v7\nv_mov_b32 v238, v8")
    else: scale_loads(6, 7, 8)
    if opt.cx:
        cm("the first x chunks are requested by the MFMA waves while they have nothing else to do")
        a.srd(20, 4, M*K*2)
        a("v_lshrrev_b32 v5, 3, v2\nv_and_b32 v6, 7, v2\nv_xor_b32 v6, v6, v5\nv_lshlrev_b32 v6, 4, v6\nv_lshl_add_u32 v5, v5, 11, v6")
        a("s_lshl_b32 s45, s36, 19\ns_lshl_b32 s46, s38, 17\ns_add_u32 s45, s45, s46\nv_add_u32 v228, s45, v5")
        for r in range(1, 8): a(f"v_add_u32 v{228+r}, {r*16384 - (r&3)*1024}, v228")
        a("s_lshl_b32 s44, s38, 13\ns_lshl_b32 s41, s36, 7\ns_add_u32 s43, s41, 1024\ns_add_u32 s45, s36, 1\ns_and_b32 s45, s45, 7\ns_lshl_b32 s45, s45, 7")
    for i in range(112): a(f"v_mov_b32 v{i}, 0")
    if not opt.sclate:
        a("s_waitcnt vmcnt(0)")
        scale_unpack()
    a("s_mov_b32 s40, 0")
    def sct():
        cm("the lines of this workgroup's first image are read once (scalar path) so that later reads of the stored data hit in L2")
        a(f"s_lshl_b32 s45, s37, 4\ns_add_u32 s45, s45, s36\ns_mul_i32 s45, s45, {IMG}\ns_mul_i32 s46, s38, 3584\ns_add_u32 s45, s45, s46\ns_add_u32 s46, s18, s45\ns_addc_u32 s47, s19, 0")
        for i in range(opt.sctn):
            a(f"s_load_dword s{(50,51,52,53,57,58,59,60,61,62,63,100,101,39)[i % 14]}, s[46:47], {64*i}")
            if i % 14 == 13 or i == opt.sctn - 1: a("s_waitcnt lgkmcnt(0)")
    if opt.sct == 1: sct()
    if 'barx' in names: a("s_barrier")
    if opt.sct == 2: sct()
    for c in opt.cx:
        for r in range(8):
            if r % 4 == 0: a(f"s_add_u32 m0, s44, {int(c)*32768+(r>>2)*4096}\ns_nop 0")
            a(f"buffer_load_dwordx4 v{228+r}, s[20:23], {('s41','s43','s45')[int(c)]} offen offset:{(r&3)*1024} {opt.aflag} lds")
    cw = lambda k: 8*len([c for c in opt.cx if int(c) > k])
    if '0' in opt.cx: a(f"s_waitcnt vmcnt({cw(0)})")
    if opt.cprio: a(f"s_setprio {opt.cprio}")
    a("s_barrier")
    stamp(2, True)
    if opt.sclate:
        assert not opt.cx
        scale_loads(236, 237, 238)
    F = (112, 156)
    def rd_list(fs, s, slot):
        base = F[fs]; l = []
        va = (200 if slot < 2 else 202) + s
        ao = 32768 if slot == 1 else 0
        for mt in range(4): l.append(f"ds_read_b128 v[{base+4*mt}:{base+4*mt+3}], v{va} offset:{ao+2048*mt}")
        for j in range(7):
            vb = 204 if j < 4 else (205 if j < 6 else 206)
            l.append(f"ds_read_b128 v[{base+16+4*j}:{base+19+4*j}], v{vb} offset:{IMG*slot+7168*s+256*j}")
        return [l[0], l[4], l[1], l[2], l[3]] + l[5:]
    def mfma(base, mt, j):
        acc = 4*(mt*7+j)
        return f"v_mfma_f32_16x16x32_bf16 v[{acc}:{acc+3}], v[{base+4*mt}:{base+4*mt+3}], v[{base+16+4*j}:{base+19+4*j}], v[{acc}:{acc+3}]"
    for r in rd_list(0, 0, 0): a(r)
    a("s_waitcnt lgkmcnt(0)")
    if opt.nobar: a("s_mov_b32 s53, 0")
    a(";HOT")
    a(".p2align 3")
    a("L_cons:")
    for slot in range(3):
        for s in range(2):
            base = F[s]
            reads = rd_list(1, 1, slot) if s == 0 else rd_list(0, 0, (slot+1) % 3)
            idx = 0
            early = s == 0 and opt.barpos > 0
            wtxt = f"s_waitcnt vmcnt({cw(slot+1)}) lgkmcnt(0)" if (s == 0 and slot < 2 and str(slot+1) in opt.cx) else "s_waitcnt lgkmcnt(0)"
            for j in range(7):
                for mt in range(4):
                    if not opt.nomfma: a(mfma(base, mt, j))
                    if idx % opt.rdstep == 0 and reads: a(reads.pop(0))
                    if opt.tail >= 2:
                        if idx == 24 and s == 1 and slot == 3 - opt.tail: a("s_add_u32 s40, s40, 1\ns_cmp_eq_u32 s40, 5")
                    elif opt.tail == 1:
                        if idx == 24 and s == 1 and slot == 2: a("s_add_u32 s40, s40, 1\ns_cmp_eq_u32 s40, 5")
                    elif idx == 24 and s == (0 if opt.peel else 1) and slot == 0: a("s_add_u32 s40, s40, 1\ns_cmp_eq_u32 s40, 6")
                    if early and idx == 27 - opt.barpos:
                        a(wtxt)
                        if not opt.barsplit: a("s_barrier")
                    if early and opt.barsplit and idx == 28 - opt.barpos: a("s_barrier")
                    idx += 1
            if early: continue
            a(wtxt)
            if s == 0:
                if opt.nobar:
                    a(f"s_cmp_ge_u32 s53, 1\ns_cbranch_scc1 L_nb{slot}\ns_barrier\nL_nb{slot}:\ns_nop 0") if slot < 3 else None
                else: a("s_barrier")
                if slot == 0 and opt.peel: a("s_cbranch_scc1 L_last\ns_nop 0")
            elif opt.tail >= 2 and slot == 3 - opt.tail: a("s_cbranch_scc1 L_tail")
            elif opt.tail == 1 and slot == 2: a("s_cbranch_scc0 L_cons")
            elif slot == 0 and not opt.peel and not opt.tail: a("s_cbranch_scc1 L_epi")
            elif slot < 2: a("s_nop 0")
            else:
                if opt.nobar: a("s_mov_b32 s53, 1")
                a("s_branch L_cons")
    st = opt.oflag
    def epi_valu(mt):
        l = []
        for r in range(4):
            regs = [4*(mt*7+j)+r for j in range(7)]
            tb = (120, 124, 164, 168)[r] if opt.tail >= 2 else ((240, 244, 248, 228)[r] if opt.tail == 1 else 112 + 4*((mt*4+r) % 8))
            for j in range(7): l.append(f"v_mul_f32 v{regs[j]}, v{SC+j}, v{regs[j]}")
            l += [f"v_cvt_pk_bf16_f32 v{tb}, v{regs[0]}, v{regs[1]}", f"v_cvt_pk_bf16_f32 v{tb+1}, v{regs[2]}, v{regs[3]}",
                  f"v_cvt_pk_bf16_f32 v{tb+2}, v{regs[4]}, v{regs[5]}", f"v_cvt_pk_bf16_f32 v{tb+3}, v{regs[6]}, v{regs[6]}"]
            if opt.epi == 'dir':
                so = "s41" if mt + r else "0"
                if mt + r: l.append(f"s_mov_b32 s41, {(mt*16+r)*7168}")
                if not opt.nostore:
                    l += [f"buffer_store_dwordx2 v[{tb}:{tb+1}], v216, s[32:35], {so} offen {st}",
                          f"buffer_store_dword v{tb+2}, v217, s[32:35], {so} offen {st}",
                          f"buffer_store_short v{tb+3}, v218, s[32:35], {so} offen {st}"]
            else:
                o = (mt*16+r)*RS
                l += [f"ds_write_b64 v216, v[{tb}:{tb+1}] offset:{o}", f"ds_write_b32 v217, v{tb+2} offset:{o}", f"ds_write_b16 v218, v{tb+3} offset:{o}"]
        return l
    def epi_read(mt):
        return [f"ds_read_b128 v[{176+16*(mt&1)+4*q}:{179+16*(mt&1)+4*q}], v219 offset:{(mt*16+4*q)*RS}" for q in range(4)]
    def epi_store(mt):
        l = []
        for q in range(4):
            l.append(f"s_mov_b32 s41, {(mt*16+4*q)*7168}")
            if not opt.nostore: l.append(f"buffer_store_dwordx4 v[{176+16*(mt&1)+4*q}:{179+16*(mt&1)+4*q}], v224, s[32:35], s41 offen {st}")
        return l
    if opt.tail:
        assert opt.epi == 'dir' and not opt.peel and not opt.cx and not opt.sclate
        def frag_reads(fs, s, slot, mts, withB=True):
            base = F[fs]; l = []
            va = (200 if slot < 2 else 202) + s
            ao = 32768 if slot == 1 else 0
            for k, mt in mts: l.append(f"ds_read_b128 v[{base+4*k}:{base+4*k+3}], v{va} offset:{ao+2048*mt}")
            if withB:
                for j in range(7):
                    vb = 204 if j < 4 else (205 if j < 6 else 206)
                    l.insert(1 + j if j == 0 else len(l), f"ds_read_b128 v[{base+16+4*j}:{base+19+4*j}], v{vb} offset:{IMG*slot+7168*s+256*j}")
            return l
        def mf(base, k, mt, j):
            acc = 4*(mt*7+j)
            return f"v_mfma_f32_16x16x32_bf16 v[{acc}:{acc+3}], v[{base+4*k}:{base+4*k+3}], v[{base+16+4*j}:{base+19+4*j}], v[{acc}:{acc+3}]"
        def step(mfs, reads, pend, nfill=2, delay=0):
            for i, m in enumerate(mfs):
                if not opt.nomfma: a(m)
                n = 0
                while n < nfill and reads and (i < 2 or True): a(reads.pop(0)); n += 1
                while n < nfill and pend and i >= delay: a(pend.pop(0)); n += 1
            for r in reads: a(r)
        a(".p2align 3")
        a("L_tail:")
        pend = []
        if opt.tail >= 2:
            cm("last chunks: row tiles 0,1 first, then 2,3 with the first half scaled, packed and stored underneath")
            order = [(1, 0), (1, 1), (2, 0), (2, 1), (0, 0), (0, 1)][-2*opt.tail:]
            NS = len(order)
            seq = [(h, sl, s) for h in range(2) for (sl, s) in order]
            for t, (h, sl, s) in enumerate(seq):
                fs = t % 2
                last = (t % NS == NS - 1)
                if last: mfs = [mf(F[fs], k, 2*h+k, j) for k in range(2) for j in range(7)]
                else: mfs = [mf(F[fs], k, 2*h+k, j) for j in range(7) for k in range(2)]
                reads = []
                if t + 1 < len(seq):
                    h2, sl2, s2 = seq[t+1]
                    reads = frag_reads(1 - fs, s2, sl2, [(0, 2*h2), (1, 2*h2+1)])
                if t == NS: pend += epi_valu(0) + epi_valu(1)
                if t == 2*NS - 1: stamp(3, True)
                step(mfs, reads, pend, delay=(1 if t == NS else 0))
                if t + 1 < len(seq): a("s_waitcnt lgkmcnt(0)")
                if t < NS - 2 and t % 2 == 0: a("s_barrier" if not opt.nobar else "s_nop 0")
                elif t + 1 < len(seq): a("s_nop 0")
            a("s_nop 7")
            for l in pend: a(l)
            if opt.stamps: a("s_waitcnt lgkmcnt(0)")
            for mt in (2, 3):
                for l in epi_valu(mt): a(l)
        else:
            cm("last chunk: both k-steps in registers, row-tile major, finished row tiles are scaled, packed and stored underneath")
            reads = frag_reads(1, 1, 0, [(k, k) for k in range(4)])
            step([mf(F[0], k, k, j) for k in range(2) for j in range(7)], reads, [])
            a("s_waitcnt lgkmcnt(0)")
            stamp(3, True)
            step([mf(F[1], 0, 0, j) for j in range(7)] + [mf(F[1], 1, 1, j) for j in range(7)], [], [])
            a(mf(F[0], 2, 2, 0))
            pend += epi_valu(0) + epi_valu(1)
            step([mf(F[0], 2, 2, j) for j in range(1, 7)] + [mf(F[1], 2, 2, j) for j in range(7)] + [mf(F[0], 3, 3, j) for j in range(7)] + [mf(F[1], 3, 3, j) for j in range(7)], [], pend)
            a("s_nop 7")
            for l in pend: a(l)
            if opt.stamps: a("s_waitcnt lgkmcnt(0)")
            for mt in (2, 3):
                for l in epi_valu(mt): a(l)
    elif opt.peel:
        cm("last k-step, row-tile major so that the first row tiles can be scaled and packed under the remaining MFMAs")
        a(".p2align 3")
        a("L_last:")
        stamp(3, True)
        if opt.stamps: a("s_waitcnt lgkmcnt(0)")
        if opt.sclate: a("s_waitcnt vmcnt(0)"); scale_unpack()
        pend = []
        for mt in range(4):
            for j in range(7):
                if not opt.nomfma: a(mfma(F[1], mt, j))
                for _ in range(opt.peel):
                    if pend: a(pend.pop(0))
            if mt >= 1 and mt - 1 == 0: pend = pend + epi_valu(0)
            if mt == 2: pend = pend + epi_valu(1)
        done = []
        a("s_nop 7")
        rest = pend
        for l in rest: a(l)
        if opt.epi == 'dir':
            for mt in (2, 3):
                for l in epi_valu(mt): a(l)
        else:
            for l in epi_read(0): a(l)
            v2 = epi_valu(2)
            for l in epi_read(1): a(l)
            a("s_waitcnt lgkmcnt(4)")
            for l in epi_store(0): a(l)
            for l in v2: a(l)
            a(f"s_waitcnt lgkmcnt(12)")
            for l in epi_store(1): a(l)
            a("s_nop 1")
            for l in epi_read(2): a(l)
            for l in epi_valu(3): a(l)
            a(f"s_waitcnt lgkmcnt(12)")
            for l in epi_store(2): a(l)
            a("s_nop 1")
            for l in epi_read(3): a(l)
            a("s_waitcnt lgkmcnt(0)")
            for l in epi_store(3): a(l)
    else:
        a("L_epi:")
        stamp(3, True)
        if opt.stamps: a("s_waitcnt lgkmcnt(0)")
        if opt.sclate: a("s_waitcnt vmcnt(0)"); scale_unpack()
        a("s_nop 7\ns_nop 7")
        if opt.epi == 'dir':
            for mt in range(4):
                for l in epi_valu(mt): a(l)
        else:
            for l in epi_valu(0): a(l)
            for mt in range(4):
                for l in epi_read(mt): a(l)
                if mt < 3:
                    for l in epi_valu(mt+1): a(l)
                    a("s_waitcnt lgkmcnt(12)")
                else: a("s_waitcnt lgkmcnt(0)")
                for l in epi_store(mt): a(l)
                a("s_nop 1")
    a(";COLD")
    stamp(4)
    if opt.stamps:
        a("s_waitcnt vmcnt(0)")
        stamp(5)
        a("s_branch L_stamps")
    a("s_endpgm")
    a("L_pfend:")

    cm("no hand-off: this wave dequantises its part of every remaining chunk itself")
    a("L_fb2:")
    a("s_waitcnt lgkmcnt(0)")
    if opt.nobar: a("s_barrier\ns_barrier\ns_endpgm")
    if a2_before == 0:
        a("s_add_u32 s60, s44, 65536\ns_add_u32 s61, s44, 69632\ns_mov_b32 s41, s82")
        for (_, t) in alist('x', SETS[0]): a(t)
    a("s_mov_b32 s48, 3\ns_mov_b32 s43, 0\ns_mov_b32 s63, 2")
    if opt.flags == 2:
        a("s_branch L_fbl")
        a("L_fb8:")
        for l in scal_list(9, SETS[0]): a(l)
        for (_, t) in alist('x', SETS[0]): a(t)
        a("s_waitcnt vmcnt(8)\ns_barrier")
        a("s_mov_b32 s48, 10\ns_mov_b32 s43, 1\ns_mov_b32 s63, 0")
    a("L_fbl: ; s48/s43: next position and its slot, s63: slot of this position")
    a("s_sub_u32 s47, s48, 1")
    chunk_dyn("s47", "s45", "s46")
    a(f"s_mul_i32 s47, s45, {QCH}\ns_lshl_b32 s45, s45, 6\nv_add_u32 v109, s45, v106")
    for r in range(8): bload(0, r, "s47")
    a(f"ds_read_b128 v[{AV[0]}:{AV[0]+3}], v109\nds_read_b128 v[{AV[0]+4}:{AV[0]+7}], v109 offset:16")
    a(f"s_mul_i32 s45, s63, {IMG}")
    for c in range(4): a(f"v_add_u32 v{114+c}, s45, v{LW+c}")
    a("s_cmp_lt_u32 s48, 16\ns_cbranch_scc1 L_fba\ns_waitcnt vmcnt(0)\ns_branch L_fbc")
    a("L_fba:")
    chunk_dyn("s48", "s45", "s46")
    a("s_lshl_b32 s41, s45, 7\ns_lshl_b32 s45, s43, 15\ns_add_u32 s60, s45, s44\ns_add_u32 s61, s60, 4096")
    for (_, t) in alist('x', SETS[0]): a(t)
    a("s_waitcnt vmcnt(8)")
    a("L_fbc:")
    a("s_waitcnt lgkmcnt(0)")
    conv(0, AV[0], P[0], range(8), wait=False)
    a("s_mov_b64 exec, s[52:53]")
    for c in range(4): a(f"ds_write_b128 v{114+c}, v[{P[0]+4*c}:{P[0]+4*c+3}]")
    a("s_mov_b64 exec, -1")
    a("s_mov_b32 s63, s43")
    a("s_add_u32 s43, s43, 1\ns_cmp_eq_u32 s43, 3\ns_cselect_b32 s43, 0, s43\ns_add_u32 s48, s48, 1\ns_cmp_le_u32 s48, 16")
    a("s_waitcnt lgkmcnt(0)\ns_barrier")
    a("s_cbranch_scc1 L_fbl")
    if opt.stamps: a("s_waitcnt vmcnt(0)\ns_mov_b32 s40, 9999")
    else: a("s_waitcnt vmcnt(0)")
    a("s_branch L_fin")
    a("L_end:")
    a("s_endpgm")
    a.lines = [l for l in a.lines if l is not None]
    if opt.al8: align8(a)
    return a


def parse(argv=None):
    ap = argparse.ArgumentParser()
    ap.add_argument('out')
    ap.add_argument('--name', default=NAME + '_kernel')
    ap.add_argument('--mapping', default='8x4')
    for f, d in (('stamps',0),('st2',0),('pf',1),('cprio',0),('nomfma',0),('nostore',0),('mix',0),('touch',7),('twhen',4),('tmo',128),
                 ('nononce',0),('noflag',0),('flags',1),('f1when',3),('itouch',0),('pre2',12),('pre3',12),('pre4',12),('peel',0),('pt',0),('pk',0),('xtlo',0),('telo',0),('wb',0),('nobar',0),('pprio',0),('rdstep',2),('barpos',0),('barsplit',0),('a3early',1),('tstag',0),('al8',1),('preall',12),('afirst',0),('sct',0),('sctn',56),('sot',0),('align',1),('tail',3),('sclate',0)):
        ap.add_argument('--' + f, type=int, default=d)
    for f, d in (('aflag',''),('wflag','sc1'),('pflag',''),('p1flag',''),('qflag','nt'),('fflag',''),('itflag',''),('pollflag','sc1'),('oflag','nt'),('epi','dir'),
                 ('su','karg,r0[0:4],small,r0[4:8],setup,et,r1+a0,nonce,ft,atab,cv0,ls0,gs0,cv1,ls1,gs1,a1,sig1,bar0,a2,bar1,it0,spl'),('su2',''),('cx','')):
        ap.add_argument('--' + f, default=d)
    o = ap.parse_args(argv)
    for k, v in vars(o).items():
        if isinstance(v, str) and k.endswith('flag'): setattr(o, k, v.replace('_', ' '))
    return o


if __name__ == '__main__':
    opt = parse()
    gen(opt).write(opt.out, single=True)
```
